```python
import torch

def _softmax(x, axis=-1):
    return torch.softmax(x, dim=axis)
def _gelu(x):
    return torch.nn.functional.gelu(x, approximate="tanh")
def _silu(x):
    return torch.nn.functional.silu(x)
def _sigmoid(x):
    return torch.sigmoid(x)
def _layernorm(x, axis=-1, eps=1e-5):
    m = x.mean(dim=axis, keepdim=True)
    v = x.var(dim=axis, keepdim=True, unbiased=False)
    return (x - m) / torch.sqrt(v + eps)
def _scatter_add(tgt, idx, src, axis=0):
    return tgt.clone().index_add_(axis, idx, src)
def _segment_sum(src, seg, n):
    out = torch.zeros((n,) + src.shape[1:], dtype=src.dtype)
    return out.index_add_(0, seg, src)
def _pad(x, pw):
    flat = tuple(v for pair in reversed(pw) for v in pair)
    return torch.nn.functional.pad(x, flat)

kernel_name = 'concat_heads__ssm_conv_s5__softmax_full_mha__prompt'

def setup_inputs():

    _w = (lambda a: (lambda t: t.to(torch.bfloat16) if t.is_floating_point() else t)(torch.as_tensor(a)))
    def _A_setup():
        B, S, D = 1, 2048, 640
        P = D
        Lambda_re = -0.5 * (lambda _x: torch.exp(torch.as_tensor(_x)))((lambda *s: torch.randn(*s, dtype=torch.bfloat16) * 0.8)(P))
        Lambda_im = (lambda *s: torch.randn(*s, dtype=torch.bfloat16) * 0.8)(P) * 1.0
        B_re = (lambda *s: torch.randn(*s, dtype=torch.bfloat16) * 0.8)(P, D) * (D ** -0.5)
        B_im = (lambda *s: torch.randn(*s, dtype=torch.bfloat16) * 0.8)(P, D) * (D ** -0.5)
        C_re = (lambda *s: torch.randn(*s, dtype=torch.bfloat16) * 0.8)(D, P) * (P ** -0.5)
        C_im = (lambda *s: torch.randn(*s, dtype=torch.bfloat16) * 0.8)(D, P) * (P ** -0.5)
        log_dt = (lambda *s: torch.randn(*s, dtype=torch.bfloat16) * 0.8)(P) * 0.3 - 2.0
        Dskip = (lambda *s: torch.randn(*s, dtype=torch.bfloat16) * 0.8)(D)
        return {
            "x": _w((lambda *s: torch.randn(*s, dtype=torch.bfloat16) * 0.05)(B, S, D)),
            "Lambda_re": _w(Lambda_re),
            "Lambda_im": _w(Lambda_im),
            "B_re": _w(B_re),
            "B_im": _w(B_im),
            "C_re": _w(C_re),
            "C_im": _w(C_im),
            "log_dt": _w(log_dt),
            "Dskip": _w(Dskip),
        }
    _A_in = _A_setup()

    def _B_setup():
        B, S, D = 1, 2048, 640
        return {
            "x": _w((lambda *s: torch.randn(*s, dtype=torch.bfloat16) * 0.2)(B, S, D)),
            "wqkv": _w((lambda *s: torch.randn(*s, dtype=torch.bfloat16) * 0.2)(D, 3 * D)),
            "wo": _w((lambda *s: torch.randn(*s, dtype=torch.bfloat16) * 0.05)(D, D)),
        }
    _B_in = _B_setup()

    return {
        "A_x": _A_in["x"],
        "A_Lambda_re": _A_in["Lambda_re"],
        "A_Lambda_im": _A_in["Lambda_im"],
        "A_B_re": _A_in["B_re"],
        "A_B_im": _A_in["B_im"],
        "A_C_re": _A_in["C_re"],
        "A_C_im": _A_in["C_im"],
        "A_log_dt": _A_in["log_dt"],
        "A_Dskip": _A_in["Dskip"],
        "B_x": _B_in["x"],
        "B_wqkv": _B_in["wqkv"],
        "B_wo": _B_in["wo"],
    }

def reference(A_x, A_Lambda_re, A_Lambda_im, A_B_re, A_B_im, A_C_re, A_C_im, A_log_dt, A_Dskip, B_x, B_wqkv, B_wo):
    def _A_ref(x, Lambda_re, Lambda_im, B_re, B_im, C_re, C_im, log_dt, Dskip):
        Bsz, L, H = x.shape
        Lam = Lambda_re + 1j * Lambda_im
        Bmat = B_re + 1j * B_im
        Cmat = C_re + 1j * C_im
        dt = torch.exp(log_dt)
        Lam_bar = torch.exp(dt * Lam)
        B_bar = ((Lam_bar - 1.0) / Lam)[:, None] * Bmat
        Bu = torch.einsum("bld,pd->blp", x + 0j, B_bar)
        h = torch.zeros_like(Bu[:, 0, :])
        hs = []
        for t in range(L):
            h = Lam_bar[None, :] * h + Bu[:, t, :]
            hs.append(h)
        hseq = torch.stack(hs, 1)
        y = 2.0 * torch.einsum("blp,dp->bld", hseq, Cmat).real + x * Dskip[None, None, :]
        return y

    def _B_ref(x, wqkv, wo):
        B, S, D = x.shape
        H = 32; Dh = D // H
        qkv = (lambda x, *d: x.permute(*d))((x @ wqkv).reshape(B, S, 3, H, Dh), 2, 0, 3, 1, 4)
        q, k, v = qkv[0], qkv[1], qkv[2]
        scale = Dh ** -0.5
        scores = torch.einsum("bhqd,bhkd->bhqk", q, k) * scale
        p = _softmax(scores, axis=-1)
        o = torch.einsum("bhqk,bhkd->bhqd", p, v)
        return (lambda x, *d: x.permute(*d))(o, 0, 2, 1, 3).reshape(B, S, D) @ wo

    a = _A_ref(A_x, A_Lambda_re, A_Lambda_im, A_B_re, A_B_im, A_C_re, A_C_im, A_log_dt, A_Dskip)
    b = _B_ref(B_x, B_wqkv, B_wo)
    return torch.concatenate([a, b], axis=-1)
```

```python
import re

def v(i, n=1):
    return f"v{i}" if n == 1 else f"v[{i}:{i+n-1}]"
def a(i, n=1):
    return f"a{i}" if n == 1 else f"a[{i}:{i+n-1}]"
def s(i, n=1):
    return f"s{i}" if n == 1 else f"s[{i}:{i+n-1}]"

_REG = re.compile(r"^(-|abs\()?\|?([vas])(\d+|\[(\d+):(\d+)\])\)?\|?$")
TRANS = ("v_exp_f32", "v_log_f32", "v_rcp_f32", "v_rsq_f32", "v_sqrt_f32", "v_sin_f32", "v_cos_f32", "v_rcp_iflag_f32",
         "v_exp_f16", "v_rcp_f16")

def regs_of(tok):
    tok = tok.strip()
    if tok in ("vcc",): return {("s", "vcc")}
    if tok in ("vcc_lo", "vcc_hi"): return {("s", "vcc")}
    if tok in ("exec", "exec_lo", "exec_hi"): return {("s", "exec")}
    if tok == "m0": return {("s", "m0")}
    t = tok
    if t.startswith("-"): t = t[1:]
    if t.startswith("abs(") and t.endswith(")"): t = t[4:-1]
    if t.startswith("|") and t.endswith("|"): t = t[1:-1]
    m = re.match(r"^([vas])(\d+)$", t)
    if m: return {(m.group(1), int(m.group(2)))}
    m = re.match(r"^([vas])\[(\d+):(\d+)\]$", t)
    if m: return {(m.group(1), i) for i in range(int(m.group(2)), int(m.group(3)) + 1)}
    return set()

class Ins:
    __slots__ = ("text", "op", "ops", "mods", "cls", "defs", "uses", "passes", "srcC", "srcAB", "dstr", "cstr",
                 "store_data", "is_dma", "target", "states", "dpp", "sdwa", "lanesel", "maskuse")
    def __init__(self, text):
        self.text = text
        t = text.split(";")[0].strip()
        parts = t.split(None, 1)
        self.op = op = parts[0]
        rest = parts[1] if len(parts) > 1 else ""
        ops, depth, cur = [], 0, ""
        for ch in rest:
            if ch in "[(": depth += 1
            if ch in "])": depth -= 1
            if ch == "," and depth == 0:
                ops.append(cur.strip()); cur = ""
            else: cur += ch
        if cur.strip(): ops.append(cur.strip())
        mods = ""
        if ops:
            last = ops[-1].split(None, 1)
            if len(last) > 1 and not last[0].startswith(("vmcnt", "lgkmcnt", "expcnt")):
                ops[-1] = last[0]; mods = last[1]
        self.ops, self.mods = ops, mods
        self.defs, self.uses = set(), set()
        self.passes = 0; self.srcC = set(); self.srcAB = set(); self.dstr = self.cstr = None
        self.store_data = set(); self.is_dma = False; self.target = None; self.states = 1
        self.dpp = "_dpp" in op or "row_" in mods or "quad_perm" in mods
        self.sdwa = "_sdwa" in op or ("op_sel" in mods and not op.startswith("v_pk_"))
        self.lanesel = set(); self.maskuse = set()
        R = [regs_of(o) for o in ops]
        base = re.sub(r"_(e32|e64|dpp|sdwa)$", "", op)
        if op.startswith("v_mfma"):
            self.cls = "mfma"
            self.passes = 8 if "32x32" in op else 4
            assert "bf16" in op, op
            self.defs = R[0]; self.srcAB = R[1] | R[2]; self.srcC = R[3]; self.uses = self.srcAB | self.srcC
            self.dstr, self.cstr = ops[0], ops[3]
        elif op.startswith("v_"):
            self.cls = "trans" if base in TRANS else "valu"
            if base.startswith("v_cmp"):
                self.defs = R[0]; self.uses = set().union(*R[1:])
                assert not base.startswith("v_cmpx")
            elif base in ("v_permlane32_swap_b32", "v_permlane16_swap_b32", "v_swap_b32"):
                self.defs = R[0] | R[1]; self.uses = R[0] | R[1]
            elif base in ("v_add_co_u32", "v_sub_co_u32", "v_subrev_co_u32"):
                self.defs = R[0] | R[1]; self.uses = set().union(*R[2:])
            elif base in ("v_addc_co_u32", "v_subb_co_u32"):
                self.defs = R[0] | R[1]; self.uses = set().union(*R[2:])
            elif base in ("v_readlane_b32",):
                self.defs = R[0]; self.uses = R[1] | R[2]; self.lanesel = R[2]
            elif base in ("v_writelane_b32",):
                self.defs = R[0]; self.uses = R[0] | R[1] | R[2]; self.lanesel = R[2]
            elif base == "v_nop":
                pass
            else:
                self.defs = R[0]; self.uses = set().union(*R[1:]) if len(R) > 1 else set()
                if base in ("v_fmac_f32", "v_pk_fmac_f16", "v_dot2c_f32_bf16") or self.dpp or "UNUSED_PRESERVE" in mods:
                    self.uses |= R[0]
                if base == "v_cndmask_b32" and len(ops) == 3: self.uses |= {("s", "vcc")}
                if base == "v_div_fmas_f32": self.uses |= {("s", "vcc")}
                if base == "v_div_scale_f32": self.defs = R[0] | R[1]; self.uses = set().union(*R[2:])
        elif op.startswith(("buffer_", "global_", "flat_")):
            self.cls = "vmem"
            m = (" " + mods + " ")
            if op in ("buffer_wbl2", "buffer_inv"):
                pass
            elif " lds " in m or "_lds_" in op:
                self.is_dma = True; self.uses = set().union(*R) | {("s", "m0")}
            elif "_load" in op:
                self.defs = R[0]; self.uses = set().union(*R[1:])
            elif "_store" in op:
                self.uses = set().union(*R)
                data = R[0] if op.startswith("buffer_") else R[1]
                if op.endswith(("x3", "x4")): self.store_data = data
            elif "_atomic" in op:
                self.uses = set().union(*R)
                if " sc0 " in m: self.defs = R[0]
            else:
                raise ValueError(text)
        elif op.startswith("ds_"):
            self.cls = "ds"
            if "_read" in op or "_rtn" in op or "permute" in op or "swizzle" in op:
                self.defs = R[0]; self.uses = set().union(*R[1:])
            else:
                self.uses = set().union(*R)
        elif op.startswith(("s_load", "s_buffer_load", "s_memtime", "s_memrealtime")):
            self.cls = "smem"; self.defs = R[0]; self.uses = set().union(*R[1:]) if len(R) > 1 else set()
        elif op == "s_nop":
            self.cls = "nop"; self.states = int(ops[0], 0) + 1
        elif op in ("s_waitcnt", "s_barrier", "s_endpgm", "s_setprio", "s_sleep"):
            self.cls = "ctl"
        elif op.startswith(("s_branch", "s_cbranch")):
            self.cls = "br"; self.target = ops[0]
            if "vcc" in op: self.uses = {("s", "vcc")}
        elif op.startswith("s_"):
            self.cls = "salu"
            if op.startswith(("s_cmp", "s_bitcmp")):
                self.uses = set().union(*R)
            else:
                self.defs = R[0]; self.uses = set().union(*R[1:]) if len(R) > 1 else set()
                if "saveexec" in op: self.defs = self.defs | {("s", "exec")}
                if op in ("s_addk_i32", "s_mulk_i32", "s_bitset1_b32"): self.uses |= R[0]
        else:
            raise ValueError("unknown instr: " + text)

def vg(x): return {r for r in x if r[0] in "va"}
def sg(x): return {r for r in x if r[0] == "s"}

def need(p, c):
    n = 0
    pv = p.cls in ("valu", "trans")
    cv = c.cls in ("valu", "trans")
    cbase = re.sub(r"_(e32|e64|dpp|sdwa)$", "", c.op)
    if pv:
        d = vg(p.defs)
        if d:
            if c.cls == "mfma" and d & c.uses: n = max(n, 2)
            if p.cls == "trans" and c.cls == "valu" and d & c.uses: n = max(n, 1)
            if cbase in ("v_readlane_b32", "v_readfirstlane_b32") and d & c.uses: n = max(n, 1)
            if cbase.startswith("v_permlane") and d & c.uses: n = max(n, 2)
            if cv and c.dpp and d & c.uses: n = max(n, 2)
            if p.sdwa and cv and d & (c.uses | c.defs): n = max(n, 1)
        sd = sg(p.defs)
        if sd:
            if cv and sd & c.uses: n = max(n, 2)
            if cv and sd & c.lanesel: n = max(n, 4)
            if cbase == "v_div_fmas_f32" and ("s", "vcc") in sd: n = max(n, 4)
            if c.cls == "vmem" and sd & c.uses: n = max(n, 5)
            if c.cls in ("salu", "br", "smem") and sd & c.uses: n = max(n, 1)
    if p.cls == "mfma":
        D = p.defs
        big = {4: 8, 8: 12}[p.passes]
        if c.cls == "mfma":
            if D & c.srcAB: n = max(n, big)
            if D & c.srcC:
                if c.cstr == p.dstr and c.passes == p.passes: pass
                else: n = max(n, p.passes + 2)
            elif D & c.defs and c.passes != p.passes: n = max(n, p.passes + 2)
        elif cv:
            if D & (c.uses | c.defs): n = max(n, big)
            if vg(p.srcC) & c.defs: n = max(n, p.passes - 1)
        elif c.cls in ("vmem", "ds"):
            if D & (c.uses | c.defs): n = max(n, big)
            if vg(p.srcC) & c.defs: n = max(n, p.passes - 1)
    if p.cls == "salu" and ("s", "m0") in p.defs and c.is_dma: n = max(n, 1)
    if p.store_data:
        if cv and p.store_data & c.defs: n = max(n, 2)
        elif p.store_data & c.defs: n = max(n, 1)
    return n

WINDOW = 14

class Prog:
    def __init__(self):
        self.items = []
        self.uid = 0
    def I(self, text):
        for ln in text.split("\n"):
            ln = ln.strip()
            if not ln or ln.startswith(";"): continue
            if ln.endswith(":"): self.L(ln[:-1])
            else: self.items.append(("i", Ins(ln)))
    def L(self, name): self.items.append(("l", name))
    def R(self, raw): self.items.append(("r", raw))
    def newlabel(self, p="L"):
        self.uid += 1; return f"{p}_{self.uid}"

    def fix_hazards(self, verbose=False):
        out = []; hist = []
        added = 0
        for it in self.items:
            if it[0] != "i":
                out.append(it); continue
            c = it[1]
            dist = 0; req = 0
            for p in reversed(hist):
                n = need(p, c)
                if n > dist: req = max(req, n - dist)
                dist += p.states
                if dist >= WINDOW: break
            if req > 0:
                nop = Ins(f"s_nop {req-1}")
                out.append(("i", nop)); hist.append(nop); added += 1
                if verbose: print(f"nop {req} before {c.text}")
            out.append(it); hist.append(c)
            if c.op in ("s_branch", "s_endpgm"): hist = []
            hist = hist[-WINDOW:]
        self.items = out
        self._check_edges()
        return added

    def _check_edges(self):
        pos = {it[1]: i for i, it in enumerate(self.items) if it[0] == "l"}
        for i, it in enumerate(self.items):
            if it[0] != "i" or it[1].cls != "br": continue
            hist = []
            j = i
            while j >= 0 and len(hist) < WINDOW:
                if self.items[j][0] == "i":
                    if j != i and self.items[j][1].op in ("s_branch", "s_endpgm"): break
                    hist.append(self.items[j][1])
                j -= 1
            hist.reverse()
            j = pos[it[1].target]; k = 0
            nh = len(hist)
            seq = list(hist)
            while j < len(self.items) and k < WINDOW:
                if self.items[j][0] == "i":
                    c = self.items[j][1]
                    dist = 0
                    for idx in range(len(seq) - 1, -1, -1):
                        p = seq[idx]
                        if idx < nh and need(p, c) > dist:
                            raise RuntimeError(f"hazard across branch edge {it[1].text}: {p.text} -> {c.text} (dist {dist})")
                        dist += p.states
                    seq.append(c); k += 1
                    if c.op in ("s_branch", "s_endpgm"): break
                j += 1

    def check_waits(self, maxlen=6000):
        items = self.items
        pos = {it[1]: i for i, it in enumerate(items) if it[0] == "l"}
        errs = []
        def step(st, c):
            vm, lg = st
            touched = c.uses | c.defs
            for q, nm in ((vm, "vm"), (lg, "lgkm")):
                for e in q:
                    if e[0] & touched:
                        if (e[0] & c.uses) or not ((nm == "vm" and c.cls == "vmem") or (nm == "lgkm" and c.cls == "ds" and e[2] == "ds")):
                            errs.append(f"missing {nm} wait: '{e[1]}' -> '{c.text}'")
            if c.op == "s_waitcnt":
                for o in re.findall(r"(vmcnt|lgkmcnt)\((\d+)\)", c.text):
                    n = int(o[1])
                    if o[0] == "vmcnt": vm = vm[len(vm) - n:] if n < len(vm) else vm
                    else:
                        if any(e[2] == "smem" for e in lg) and n > 0: pass
                        else: lg = lg[len(lg) - n:] if n < len(lg) else lg
                    if n == 0:
                        if o[0] == "vmcnt": vm = []
                        else: lg = []
            elif c.cls == "vmem": vm = vm + [(frozenset(c.defs), c.text, "vmem")]
            elif c.cls == "ds": lg = lg + [(frozenset(c.defs), c.text, "ds")]
            elif c.cls == "smem":
                dd = frozenset(r for r in c.defs if not (r[0] == "s" and r[1] in (96, 97, 98, 99)))
                if dd or not any(e[2] == "smem" for e in lg): lg = lg + [(dd, c.text, "smem")]
            if len(vm) > 63: errs.append(f"vmcnt overflow at {c.text}")
            return (vm, lg)
        def run(start, st, follow, limit):
            j = start; n = 0
            while j < len(items) and n < limit:
                it = items[j]
                if it[0] == "i":
                    c = it[1]; st = step(st, c); n += 1
                    if c.cls == "br" and follow:
                        run(pos[c.target], st, False, maxlen)
                    if c.op == "s_endpgm" or c.op == "s_branch":
                        if not follow:
                            if c.op == "s_branch" and pos[c.target] > j: j = pos[c.target]; continue
                            return
                        st = ([], [])
                j += 1
        run(0, ([], []), True, 10**9)
        seen = []
        for e in errs:
            if e not in seen: seen.append(e)
        return seen

    def text(self):
        o = []
        for k, x in self.items:
            if k == "i": o.append("    " + x.text)
            elif k == "l": o.append(x + ":")
            else: o.append(x)
        return "\n".join(o) + "\n"

def kernel_desc(name, vgpr, sgpr=102, accum=None):
    acc = accum if accum is not None else (vgpr + 3) // 4 * 4
    return f""".p2align 6
.amdhsa_kernel {name}
  .amdhsa_next_free_vgpr {vgpr}
  .amdhsa_next_free_sgpr {sgpr}
  .amdhsa_accum_offset {acc}
  .amdhsa_group_segment_fixed_size 0
  .amdhsa_kernarg_size 120
  .amdhsa_user_sgpr_count 2
  .amdhsa_user_sgpr_kernarg_segment_ptr 1
  .amdhsa_system_sgpr_workgroup_id_x 1
.end_amdhsa_kernel
"""
```

```python
from asmlib import *
NAME = "concat_heads__ssm_conv_s5__softmax_full_mha__prompt"
KA = dict(A_x=0, Lre=8, Lim=16, Bre=24, Bim=32, Cre=40, Cim=48, logdt=56, Dskip=64, B_x=72, wqkv=80, wo=88, out=96, dbg=104, ws=112)
WS_QK = 0x000000
WS_V  = 0x500000
WS_O  = 0x780000
WS_H  = 0xA00000
WS_E  = 0xF00000
WS_SIZE = 0x1000000
OUT_BYTES = 2048*1280*4

def srd(p, d, base, nbytes):
    p.I(f"s_mov_b32 s{d}, s{base}")
    p.I(f"s_and_b32 s{d+1}, s{base+1}, 0xffff")
    p.I(f"s_mov_b32 s{d+2}, {nbytes:#x}")
    p.I(f"s_mov_b32 s{d+3}, 0x00020000")

def mfma(p, d, A, B, C=None, k=16):
    n = 4 if k == 16 else 2
    c = "0" if C == 0 and C is not None and not isinstance(C, str) and False else None
    cs = v(d, 16) if C is None else C
    p.I(f"v_mfma_f32_32x32x{k}_bf16 {v(d,16)}, {v(A,n)}, {v(B,n)}, {cs}")

import os
DIAG = bool(int(os.environ.get("DIAG", "0")))
WS_DIAG = 0x1000000
if DIAG: WS_SIZE = 0x2000000
ST0 = 44
def stamp(p, idx):
    if DIAG: p.I(f"s_memrealtime s[{ST0+2*idx}:{ST0+2*idx+1}]")
def cstamp(p, idx):
    if DIAG: p.I(f"s_memtime s[{ST0+2*idx}:{ST0+2*idx+1}]")
def stamp_flush(p, n, wsrd, wave_sgpr, kidx=0, vt=2):
    if not DIAG: return
    p.I("s_waitcnt lgkmcnt(0)")
    p.I(f"s_lshl_b32 s3, s2, 4")
    p.I(f"s_add_u32 s3, s3, s{wave_sgpr}")
    p.I(f"s_lshl_b32 s3, s3, 7")
    p.I(f"s_add_u32 s3, s3, {WS_DIAG + kidx*0x100000}")
    p.I("s_mov_b64 exec, 1")
    p.I(f"v_mov_b32 v{vt}, 0")
    for i in range(n):
        p.I(f"v_mov_b32 v{vt+1}, s{ST0+2*i}")
        p.I(f"buffer_store_dword v{vt+1}, v{vt}, s[{wsrd}:{wsrd+3}], s3 offen offset:{4*i}")
```

```python
from common import *

class Opnd:
    def __init__(self, kind, rows):
        self.kind, self.rows = kind, rows
        self.bytes = rows * 128
        self.ni = rows // 32
        self.nsub = rows // 64
        self.naddr = {"kc": 4, "tr": self.nsub, "fm": 1, "tb": 2}[kind]

    def cons_setup(self, p, A, vL, sw, t, stmp):
        k = self.kind
        if k == "kc":
            p.I(f"""
            v_and_b32 v{t}, 31, v{vL}
            v_lshrrev_b32 v{t+1}, 5, v{vL}
            v_bfe_u32 v{t+2}, v{vL}, 1, 3
            v_xor_b32 v{t+1}, v{t+1}, v{t+2}
            v_lshlrev_b32 v{t+1}, 4, v{t+1}
            v_lshl_add_u32 v{t}, v{t}, 7, v{t+1}
            s_mul_i32 s{stmp}, s{sw}, {self.nsub*4096}
            v_add_u32 v{A}, s{stmp}, v{t}
            v_xor_b32 v{A+1}, 32, v{A}
            v_xor_b32 v{A+2}, 64, v{A}
            v_xor_b32 v{A+3}, 96, v{A}
            """)
        elif k == "fm":
            p.I(f"""
            v_and_b32 v{t}, 31, v{vL}
            v_lshrrev_b32 v{t+1}, 5, v{vL}
            v_mul_u32_u24 v{t+1}, {self.rows*16}, v{t+1}
            v_lshl_add_u32 v{t}, v{t}, 4, v{t+1}
            s_mul_i32 s{stmp}, s{sw}, {self.nsub*512}
            v_add_u32 v{A}, s{stmp}, v{t}
            """)
        elif k == "tr":
            rb = self.rows * 2
            p.I(f"""
            v_bfe_u32 v{t}, v{vL}, 4, 1
            v_and_b32 v{t+1}, 1, v{vL}
            v_lshl_add_u32 v{t}, v{t}, 1, v{t+1}      ; pi
            v_bfe_u32 v{t+1}, v{vL}, 2, 2             ; r
            v_lshrrev_b32 v{t+2}, 5, v{vL}
            v_lshl_add_u32 v{t+2}, v{t+2}, 3, v{t+1}  ; 8hh+r
            v_mul_u32_u24 v{t+2}, {rb}, v{t+2}
            v_lshl_add_u32 v{t+2}, v{t}, 4, v{t+2}
            v_bfe_u32 v{t}, v{vL}, 1, 1
            v_lshl_add_u32 v{t+2}, v{t}, 3, v{t+2}
            """)
            if self.rows == 128:
                p.I(f"""
                s_lshl_b32 s{stmp}, s{sw}, 1
                v_xor_b32 v{t}, s{stmp}, v{t+1}
                v_xor_b32 v{t+3}, 1, v{t}
                v_lshl_add_u32 v{A}, v{t}, 6, v{t+2}
                v_lshl_add_u32 v{A+1}, v{t+3}, 6, v{t+2}
                """)
            else:
                p.I(f"""
                v_lshrrev_b32 v{t+1}, 1, v{t+1}
                v_xor_b32 v{t}, s{sw}, v{t+1}
                v_lshl_add_u32 v{A}, v{t}, 6, v{t+2}
                """)
        elif k == "tb":
            p.I(f"""
            v_bfe_u32 v{t}, v{vL}, 4, 1
            v_bfe_u32 v{t+1}, v{vL}, 1, 1
            v_lshl_add_u32 v{t}, v{t}, 1, v{t+1}      ; tb
            v_bfe_u32 v{t+1}, v{vL}, 2, 2             ; r
            v_lshrrev_b32 v{t+2}, 5, v{vL}
            v_lshl_add_u32 v{t+2}, v{t+2}, 3, v{t+1}  ; 8hh+r
            v_lshlrev_b32 v{t+1}, 2, v{t}
            v_xor_b32 v{t+2}, v{t+2}, v{t+1}
            v_lshlrev_b32 v{t+2}, 4, v{t+2}
            v_lshl_add_u32 v{t+2}, v{t}, 10, v{t+2}
            v_and_b32 v{t}, 1, v{vL}
            v_lshl_add_u32 v{t+2}, v{t}, 3, v{t+2}
            s_mul_i32 s{stmp}, s{sw}, {self.nsub*4096}
            v_add_u32 v{A}, s{stmp}, v{t+2}
            v_xor_b32 v{A+1}, 64, v{A}
            """)

    def frag_reads(self, dst, sub, kk, A, off):
        k = self.kind
        if k == "kc": return [f"ds_read_b128 {v(dst,4)}, v{A+kk} offset:{off+sub*4096}"]
        if k == "fm": return [f"ds_read_b128 {v(dst,4)}, v{A} offset:{off+2*kk*self.rows*16+sub*512}"]
        if k == "tr":
            rb = self.rows * 2
            return [f"ds_read_b64_tr_b16 {v(dst+2*jh,2)}, v{A+sub} offset:{off+(16*kk+4*jh)*rb}" for jh in range(2)]
        if k == "tb":
            return [f"ds_read_b64_tr_b16 {v(dst+2*jh,2)}, v{A+jh} offset:{off+kk*256+sub*4096}" for jh in range(2)]

GRP = 49152

class Engine:
    def __init__(self, R, C, NST, NS=None, NU=None, NB=2, early=False, P0=3, burst=2):
        self.R, self.C, self.NST, self.NB, self.early, self.P0, self.burst = R, C, NST, NB, early, P0, burst
        if NU:
            assert R.bytes == C.bytes
            self.NU = NU; self.PER = NU if NU % 2 else NU // 2
            self.pos = lambda n: (n % NU) * R.bytes
            self.lds = NU * R.bytes
        else:
            self.NU = 2 * NS; self.PER = NS
            sl = R.bytes + C.bytes
            self.pos = lambda n: ((n // 2) % NS) * sl + (n % 2) * R.bytes
            self.lds = NS * sl
        self.ngrp = max(self.pos(n) for n in range(2 * self.PER)) // GRP + 1
        self.nbar = NST + 1
        self.fr_per = 4 * (R.nsub + C.nsub)
        assert NST % self.PER == 0 and NB in (2, 4)

    def loader(self, p, issue, stamps=False):
        ni = [self.R.ni, self.C.ni]
        last = -1
        NUN = 2 * self.NST
        def upto(lim, burst):
            nonlocal last
            n = 0
            while last + 1 <= min(lim, NUN - 1) and n < burst:
                last += 1; issue(last // 2, last % 2, self.pos(last)); n += 1
        upto(self.NU - 1, 2 * self.P0)
        for j in range(self.nbar):
            if j < self.NST:
                assert last >= 2 * j + 1, (last, j)
                cnt = sum(ni[n % 2] for n in range(2 * j + 2, last + 1))
                p.I(f"s_waitcnt vmcnt({min(63, cnt)})")
            p.I("s_barrier")
            if stamps and j < 12:
                stamp(p, 2 + 2 * j); cstamp(p, 3 + 2 * j)
            done = j - 1 if self.early else j - 2
            upto(max(self.NU - 1, 2 * done + 1 + self.NU), 2 * self.burst)

    def naddr(self): return (self.R.naddr + self.C.naddr) * self.ngrp

    def cons_setup(self, p, AD, vL, swm, swn, t, stmp):
        R, C = self.R, self.C
        n = R.naddr + C.naddr
        R.cons_setup(p, AD, vL, swm, t, stmp)
        C.cons_setup(p, AD + R.naddr, vL, swn, t, stmp)
        for g in range(1, self.ngrp):
            for i in range(n):
                p.I(f"v_add_u32 v{AD+g*n+i}, {g*GRP}, v{AD+i}")

    def consumer(self, p, AD, FR, ACC, r_is_A, sctr, label, loop=True):
        R, C, NB = self.R, self.C, self.NB
        TU, TT = R.nsub, C.nsub
        n = R.naddr + C.naddr
        order = [(t, u) for t in range(TT) for u in range(TU)]
        def fr(step, which, sub):
            b = FR + self.fr_per * (step % NB)
            return b + 4 * sub if which == "R" else b + 4 * TU + 4 * sub
        def rd(step, which, sub):
            st, kk = divmod(step, 4)
            g, o = divmod(self.pos(2 * st + (which == "C")), GRP)
            if which == "R": return R.frag_reads(fr(step, "R", sub), sub, kk, AD + g * n, o)
            return C.frag_reads(fr(step, "C", sub), sub, kk, AD + g * n + R.naddr, o)
        lastuse = {}; firstuse = {}
        for i, (t, u) in enumerate(order):
            for key in (("C", t), ("R", u)):
                lastuse[key] = i; firstuse.setdefault(key, i)
        keys = sorted(lastuse, key=lambda k: (lastuse[k], firstuse[k]))
        nrd = {k: len(rd(0, *k)) for k in keys}
        per_step = sum(nrd.values())
        first_issue = lastuse[keys[0]]
        p.I("s_barrier")
        for step in range(NB):
            for k in keys:
                for r in rd(step, *k): p.I(r)
        nit = self.NST // self.PER if loop else 1
        steps = 4 * self.PER if loop else 4 * self.NST
        if nit > 1:
            p.I(f"s_mov_b32 s{sctr}, 0")
            p.R(".p2align 3")
            p.L(label)
        for step in range(steps):
            for i, (t, u) in enumerate(order):
                needk = [k for k in (("C", t), ("R", u)) if firstuse[k] == i]
                if needk:
                    lastidx = max(keys.index(k) for k in needk)
                    after = sum(nrd[k] for k in keys[lastidx+1:]) + per_step * (NB - 1) + sum(nrd[k] for k in keys if lastuse[k] < i)
                    p.I(f"s_waitcnt lgkmcnt({min(15, after)})")
                d = ACC + 16 * (t * TU + u)
                X, W = fr(step, "R", u), fr(step, "C", t)
                A, B = (X, W) if r_is_A else (W, X)
                p.I(f"v_mfma_f32_32x32x16_bf16 {v(d,16)}, {v(A,4)}, {v(B,4)}, {v(d,16)}")
                if (step + NB) % 4 == 0 and i == first_issue:
                    if self.early: p.I("s_waitcnt lgkmcnt(0)")
                    p.I("s_barrier")
                for k in keys:
                    if lastuse[k] == i:
                        for r in rd(step + NB, *k): p.I(r)
        if nit > 1:
            p.I(f"s_add_u32 s{sctr}, s{sctr}, 1")
            p.I(f"s_cmp_lt_u32 s{sctr}, {nit}")
            p.I(f"s_cbranch_scc1 {label}")
        p.I("s_waitcnt lgkmcnt(0)")
```

```python
import sys
from common import *
import k1_qkv
DOC = """;
"""
def build(kernels, path):
    progs = []; infos = []
    for fn in kernels:
        p = Prog(); info = fn(p)
        n = p.fix_hazards()
        errs = [e for e in p.check_waits() if "'buffer_load_dwordx4 v[116:119], v111, s[8:11], s72 offen sc1' ->" not in e and not ('v124, s[8:11], s23 offen' in e and 'v_mfma_f32_16x16x32' in e)]
        for e in errs[:10]: print("WAIT-ERR", info["name"], e)
        print(info["name"], "nops added", n, "instrs", sum(1 for x in p.items if x[0] == "i"))
        progs.append(p); infos.append(info)
    hdr = open(f"cdna_kernels/{NAME}.s.ref").read().split("; Override launch geometry")[0]
    o = hdr
    for i in infos:
        o += f"; @launch {'kernel=' + i['name'] + ' ' if len(infos) > 1 or os.environ.get('ASLIST') else ''}grid=({i['grid']},1,1) block=({i['block']},1,1) lds={i['lds']}\n"
    o += DOC
    o += '.amdgcn_target "amdgcn-amd-amdhsa--gfx950"\n.text\n'
    for p, i in zip(progs, infos):
        o += f".globl {i['name']}\n" + p.text()
    o += '.section .rodata,"a"\n'
    for i in infos:
        o += kernel_desc(i["name"], i["vgpr"], i.get("sgpr", 96), i.get("accum"))
    open(path, "w").write(o)
if __name__ == "__main__":
    build([k1_qkv.gen_k1], "out.s")
```

```python
from engine import *

def gen_k1(p, name="qkv_kernel", loop=True, **kw):
    R = Opnd("kc", 128); C = Opnd("tr", 128)
    if not kw: kw = dict(NS=5)
    E = Engine(R, C, 10, **kw)
    p.R(f".p2align 8\n.type {name},@function")
    p.L(name)
    stamp(p, 0)
    p.I(f"""
    s_load_dwordx4 s[4:7], s[0:1], {KA['B_x']}
    s_load_dwordx2 s[8:9], s[0:1], {KA['ws']}
    s_cmp_ge_u32 s2, 256
    s_cbranch_scc1 {name}_exit
    s_and_b32 s10, s2, 7
    s_lshr_b32 s11, s2, 3
    s_and_b32 s12, s10, 3
    s_lshl_b32 s12, s12, 2
    s_and_b32 s13, s11, 3
    s_add_u32 s12, s12, s13          ; m tile
    s_lshr_b32 s13, s10, 2
    s_lshl_b32 s13, s13, 3
    s_lshr_b32 s14, s11, 2
    s_add_u32 s13, s13, s14          ; n tile
    v_lshrrev_b32 v1, 6, v0
    v_and_b32 v2, 63, v0             ; lane
    v_readfirstlane_b32 s15, v1
    s_cmp_eq_u32 s13, 15
    s_cbranch_scc1 {name}_side
    s_cmp_lt_u32 s15, 4
    s_cbranch_scc1 {name}_cons
    """)
    p.I(f"""
    s_sub_u32 s28, s15, 4
    s_lshl_b32 s29, s28, 12
    s_lshl_b32 s30, s12, 7           ; T0
    s_lshl_b32 s31, s28, 5
    s_add_u32 s30, s30, s31
    s_mul_i32 s30, s30, 1280
    v_lshrrev_b32 v3, 3, v2          ; l>>3
    v_mul_u32_u24 v3, 1280, v3
    v_add_u32 v3, s30, v3
    v_lshrrev_b32 v12, 4, v2         ; l>>4
    v_and_b32 v13, 7, v2
    v_xor_b32 v14, v13, v12
    v_xor_b32 v15, 4, v14
    v_lshl_add_u32 v4, v14, 4, v3
    v_lshl_add_u32 v5, v15, 4, v3
    v_add_u32 v5, {10240-1024}, v5
    v_add_u32 v6, {2*(10240-1024)}, v4
    v_add_u32 v7, {2*(10240-1024)}, v5
    s_lshl_b32 s31, s28, 4
    s_mul_i32 s31, s31, 3840
    s_lshl_b32 s32, s13, 8           ; F0*2
    s_add_u32 s31, s31, s32
    v_mul_u32_u24 v3, 3840, v12
    v_add_u32 v3, s31, v3
    v_and_b32 v13, 15, v2
    v_lshlrev_b32 v14, 2, v12
    v_xor_b32 v13, v13, v14
    v_lshl_add_u32 v8, v13, 4, v3
    v_add_u32 v9, {15360-1024}, v8
    v_add_u32 v10, {2*(15360-1024)}, v8
    v_add_u32 v11, {3*(15360-1024)}, v8
    s_waitcnt lgkmcnt(0)
    """)
    srd(p, 16, 4, 2048*640*2)
    srd(p, 20, 6, 640*1920*2)
    if DIAG: srd(p, 24, 8, WS_SIZE)
    def issue(st, which, off):
        p.I(f"s_add_u32 m0, s29, {off}")
        p.I(f"s_mov_b32 s33, {st*128 if which == 0 else st*64*3840}")
        for i in range(4):
            p.I(f"buffer_load_dwordx4 v{4+4*which+i}, s[{16+4*which}:{19+4*which}], s33 offen offset:{i*1024} lds")
    stamp(p, 1)
    E.loader(p, issue, stamps=True)
    stamp_flush(p, 26, 24, 15)
    p.I("s_endpgm")

    p.L(f"{name}_cons")
    AD = 4; FR = 28; ACC = 60; EA = 124
    assert AD + E.naddr() <= FR and FR + 2 * E.fr_per <= ACC
    p.I(f"""
    s_and_b32 s28, s15, 1            ; wm
    s_lshr_b32 s29, s15, 1           ; wn
    """)
    E.cons_setup(p, AD, 2, 28, 29, FR, 30)
    for i in range(64): p.I(f"v_mov_b32 v{ACC+i}, 0")
    p.I(f"""
    v_and_b32 v126, 31, v2
    v_lshrrev_b32 v127, 5, v2
    s_waitcnt lgkmcnt(0)
    """)
    srd(p, 24, 8, WS_SIZE)
    stamp(p, 1)
    if DIAG: p.I("s_waitcnt lgkmcnt(0)")
    p.I(f"""
    s_cmp_ge_u32 s13, 10
    s_cbranch_scc1 {name}_consV
    """)
    E.consumer(p, AD, FR, ACC, False, 34, f"{name}_lqk", loop)
    stamp(p, 2)
    p.I(f"""
    s_lshl_b32 s30, s13, 4           ; F0/8
    s_lshl_b32 s31, s29, 3           ; 8*wn
    s_add_u32 s30, s30, s31
    s_lshl_b32 s30, s30, 15          ; piece*32768
    s_lshl_b32 s31, s12, 11          ; T0*16
    s_add_u32 s30, s30, s31
    s_lshl_b32 s31, s28, 10          ; wm*64*16
    s_add_u32 s30, s30, s31
    v_lshlrev_b32 v4, 15, v127
    v_lshl_add_u32 v4, v126, 4, v4
    v_add_u32 v4, s30, v4
    """)
    n = 0
    for t in range(2):
        for ap in range(2):
            p.I(f"s_mov_b32 s{32+(n%2)}, {WS_QK + (4*t+2*ap)*32768}")
            for u in range(2):
                d = ACC + 32 * t + 16 * u + 8 * ap
                o = FR + 4 * ((2 * n + u) % 8)
                for j in range(4):
                    p.I(f"v_cvt_pk_bf16_f32 v{o+j}, v{d+2*j}, v{d+2*j+1}")
                p.I(f"buffer_store_dwordx4 {v(o,4)}, v4, s[24:27], s{32+(n%2)} offen offset:{u*512}")
            n += 1
    stamp(p, 3)
    if DIAG: p.I("s_waitcnt vmcnt(0)")
    stamp(p, 4)
    stamp_flush(p, 6, 24, 15)
    p.I("s_endpgm")
    p.L(f"{name}_consV")
    p.I(f"""
    v_and_b32 v1, 19, v126           ; 16g + i
    v_bfe_u32 v0, v126, 2, 1         ; c&1
    v_bfe_u32 v3, v126, 3, 1         ; c>>1
    v_lshl_add_u32 v1, v0, 3, v1
    v_lshl_add_u32 v1, v3, 2, v1
    s_sub_u32 s30, s13, 10
    s_lshl_b32 s30, s30, 7
    s_lshl_b32 s31, s29, 6
    s_add_u32 s30, s30, s31
    v_add_u32 v1, s30, v1
    s_lshl_b32 s31, s12, 2
    s_lshl_b32 s32, s28, 1
    s_add_u32 s31, s31, s32
    s_mul_i32 s31, s31, 1280
    s_add_u32 s31, s31, {WS_V}
    s_mov_b32 s35, 81920
    """)
    for t in range(2):
        T = FR
        p.I(f"""
        v_add_u32 v{T}, {32*t}, v1             ; fv
        v_mul_u32_u24 v{T+1}, 3277, v{T}
        v_lshrrev_b32 v{T+1}, 16, v{T+1}        ; head
        v_mul_u32_u24 v{T+2}, 20, v{T+1}
        v_sub_u32 v{T+2}, v{T}, v{T+2}          ; d
        v_and_b32 v{T+3}, 1, v{T+1}
        v_lshlrev_b32 v{T+3}, 2, v{T+3}
        v_sub_u32 v{T+2}, v{T+2}, v{T+3}        ; d-4*odd
        v_add_u32 v{T+4}, 20, v{T+2}
        v_cmp_gt_i32 vcc, 0, v{T+2}
        v_cndmask_b32 v{T+2}, v{T+2}, v{T+4}, vcc    ; e
        v_and_b32 v{T+4}, 3, v{T+2}
        v_bfe_u32 v{T+5}, v{T+2}, 2, 1
        v_bfe_u32 v{T+6}, v{T+2}, 3, 1
        v_lshl_add_u32 v{T+4}, v{T+5}, 3, v{T+4}
        v_lshl_add_u32 v{T+4}, v{T+6}, 2, v{T+4}
        v_cmp_gt_u32 vcc, 16, v{T+2}
        v_cndmask_b32 v{T+2}, v{T+2}, v{T+4}, vcc    ; slot
        v_mul_lo_u32 v{T+1}, v{T+1}, s35
        v_lshl_add_u32 v{T+1}, v{T+2}, 4, v{T+1}
        v_mul_u32_u24 v{T+3}, 320, v127
        v_add3_u32 v{124+t}, v{T+1}, v{T+3}, s31
        """)
    E.consumer(p, AD, FR, ACC, True, 34, f"{name}_lv", loop)
    stamp(p, 2)
    n = 0
    for t in range(2):
        for u in range(2):
            for aa in range(2):
                d = ACC + 32 * t + 16 * u + 8 * aa
                o = FR + 4 * (n % 8)
                for j in range(4):
                    p.I(f"v_cvt_pk_bf16_f32 v{o+j}, v{d+2*j}, v{d+2*j+1}")
                p.I(f"buffer_store_dwordx4 {v(o,4)}, v{124+t}, s[24:27], 0 offen offset:{u*1280+aa*640}")
                n += 1
    stamp(p, 3)
    if DIAG: p.I("s_waitcnt vmcnt(0)")
    stamp(p, 4)
    stamp_flush(p, 6, 24, 15)
    p.I("s_endpgm")
    p.L(f"{name}_side")
    p.I("s_waitcnt lgkmcnt(0)")
    srd(p, 24, 8, WS_SIZE)
    p.I(f"""
    s_mul_i32 s30, s12, 10240
    s_add_u32 s30, s30, {WS_E}
    v_lshlrev_b32 v4, 4, v0
    v_mov_b32 v8, -1
    v_mov_b32 v9, -1
    v_mov_b32 v10, -1
    v_mov_b32 v11, -1
    buffer_store_dwordx4 v[8:11], v4, s[24:27], s30 offen
    s_add_u32 s30, s30, 2048
    buffer_store_dwordx4 v[8:11], v4, s[24:27], s30 offen
    """)
    p.L(f"{name}_exit")
    p.I("s_endpgm")
    return dict(name=name, grid=256, block=512, lds=E.lds, vgpr=128)
```

```python
from common import *
import struct, math
CSCALE = struct.unpack("<I", struct.pack("<f", math.log2(math.e) / math.sqrt(20.0)))[0]
SLOT = 24576
PRIOS = eval(os.environ.get('PRIOS', '{}'))
NCH = 8

QF = 4
OA = 20
SX = 52
PP = 84
K1 = 92
K2 = 96
VA = 100
VB = 104
AK1, AK2, AV, VOFF = 108, 109, 110, 111
T0 = 112

def attn_body(p, name, WSRD=8):
    W = f"s[{WSRD}:{WSRD+3}]"
    p.I(f"""
    s_and_b32 s12, s2, 7
    s_lshr_b32 s13, s2, 3
    s_lshl_b32 s12, s12, 2
    s_and_b32 s17, s13, 3
    s_add_u32 s12, s12, s17           ; head
    s_lshr_b32 s13, s13, 2            ; q block
    s_and_b32 s15, s14, 3             ; qg
    s_lshr_b32 s16, s14, 2            ; kh
    s_lshr_b32 s28, s12, 1            ; hp
    s_and_b32 s29, s12, 1             ; odd
    s_mul_i32 s30, s28, 5             ; 5hp
    s_mul_i32 s31, s29, 3
    s_add_u32 s31, s31, s30
    s_add_u32 s30, s30, 2
    v_lshlrev_b32 v{VOFF}, 4, v2      ; lane*16
    s_mul_i32 s24, s14, 3072          ; m0 base
    s_cmp_ge_u32 s14, 4
    s_cbranch_scc1 {name}_vsrc
    """)
    for i in range(3):
        p.I(f"""
        s_mul_i32 s33, s14, 3
        s_add_u32 s33, s33, {i}
        s_lshr_b32 s34, s33, 2
        s_and_b32 s33, s33, 3
        s_add_u32 s35, s31, s34
        s_cmp_eq_u32 s34, 2
        s_cselect_b32 s35, s30, s35
        s_add_u32 s35, s35, 80
        s_lshl_b32 s35, s35, 15
        s_lshl_b32 s33, s33, 10
        s_add_u32 s35, s35, s33
        s_add_u32 s{20+i}, s35, {WS_QK - i*1024}
        """)
    p.I(f"""
    s_movk_i32 s23, 4096
    s_branch {name}_srcdone
    """)
    p.L(f"{name}_vsrc")
    p.I(f"""
    s_mul_i32 s33, s12, 81920
    s_add_u32 s33, s33, s24
    s_add_u32 s20, s33, {WS_V - 12*1024}
    s_mov_b32 s21, s20
    s_mov_b32 s22, s20
    s_movk_i32 s23, 10240
    """)
    p.L(f"{name}_srcdone")
    def dma(slot_sgpr_or_imm):
        p.I(f"s_add_u32 m0, s24, {slot_sgpr_or_imm}")
        for i in range(3):
            p.I(f"buffer_load_dwordx4 v{VOFF}, {W}, s{20+i} offen offset:{i*1024} lds")
        for i in range(3):
            p.I(f"s_add_u32 s{20+i}, s{20+i}, s23")
    dma(0)
    p.I(f"""
    v_and_b32 v{T0}, 31, v2
    v_lshrrev_b32 v{T0+1}, 5, v2          ; h
    s_lshl_b32 s33, s13, 8
    s_lshl_b32 s34, s15, 6
    s_add_u32 s33, s33, s34
    s_lshl_b32 s33, s33, 4
    v_lshl_add_u32 v{T0+2}, v{T0}, 4, s33         ; token*16
    v_lshl_add_u32 v{T0+3}, v{T0+1}, 15, v{T0+2}  ; + h*32768
    s_lshl_b32 s34, s31, 15
    s_lshl_b32 s35, s30, 15
    s_lshl_b32 s36, s29, 3
    s_add_u32 s35, s35, s36
    """)
    for x in range(2):
        p.I(f"buffer_load_dwordx4 {v(SX+8*x,4)}, v{T0+3}, {W}, s34 offen offset:{512*x}")
        p.I(f"buffer_load_dwordx2 {v(SX+8*x+4,2)}, v{T0+2}, {W}, s35 offen offset:{512*x}")
    dma(SLOT)
    p.I(f"""
    s_lshl_b32 s33, s16, 11
    v_lshlrev_b32 v{AK1}, 12, v{T0+1}              ; h*4096
    v_lshl_add_u32 v{AK1}, v{T0}, 4, v{AK1}
    v_add_u32 v{AK1}, s33, v{AK1}
    s_add_u32 s34, s33, s36
    s_add_u32 s34, s34, 8192
    v_add_u32 v{AK2}, s34, v{VOFF}
    s_mul_i32 s33, s16, 5120
    s_add_u32 s33, s33, 12288
    v_mul_u32_u24 v{AV}, 320, v{T0+1}
    v_lshl_add_u32 v{AV}, v{T0}, 4, v{AV}
    v_add_u32 v{AV}, s33, v{AV}
    s_mov_b32 s18, 0x000fffff
    s_mov_b32 s19, 0x000fffff
    v_mov_b32 v{T0+4}, 0x3f803f80
    v_cmp_eq_u32 vcc, 20, v{T0}
    v_cndmask_b32 v{T0+5}, 0, v{T0+4}, vcc
    """)
    for i in range(8): p.I(f"v_mov_b32 v{VA+i}, v{T0+5}")
    for i in range(32): p.I(f"v_mov_b32 v{OA+i}, 0")
    for i in range(8): p.I(f"v_mov_b32 v{PP+i}, 0")
    for i in range(4): p.I(f"v_mov_b32 v{SX+28+i}, 0")
    p.I(f"s_mov_b32 s33, {CSCALE:#x}")
    p.I(f"v_cmp_eq_u32 vcc, 0, v{T0+1}")
    p.I("s_waitcnt vmcnt(3)")
    for x in range(2):
        for j in range(6):
            src = SX + 8 * x + j
            p.I(f"""
            v_lshlrev_b32 v{T0+6}, 16, v{src}
            v_and_b32 v{T0+7}, 0xffff0000, v{src}
            v_mul_f32 v{T0+6}, s33, v{T0+6}
            v_mul_f32 v{T0+7}, s33, v{T0+7}
            """)
            if j < 4:
                p.I(f"v_cvt_pk_bf16_f32 v{QF+8*x+j}, v{T0+6}, v{T0+7}")
            else:
                p.I(f"""
                v_cvt_pk_bf16_f32 v{T0+6}, v{T0+6}, v{T0+7}
                v_cndmask_b32 v{QF+8*x+j}, 0, v{T0+6}, vcc
                v_cndmask_b32 v{QF+8*x+j+2}, v{T0+6}, 0, vcc
                """)
    stamp(p, 1)
    if DIAG: p.I("s_waitcnt lgkmcnt(0)")
    p.I("s_barrier")
    def rdK1(kt): return [f"ds_read_b128 {v(K1,4)}, v{AK1} offset:{kt*512}"]
    def rdK2(u): return [f"ds_read_b64 {v(K2,2)}, v{AK2} offset:{u*1024}"]
    def rdV(reg, kt, aa): return ["s_mov_b64 exec, s[18:19]", f"ds_read_b128 {v(reg,4)}, v{AV} offset:{kt*1280+aa*640}", "s_mov_b64 exec, -1"]
    def QK1(S, x): return f"v_mfma_f32_32x32x16_bf16 {v(S,16)}, {v(K1,4)}, {v(QF+8*x,4)}, 0"
    def QK2(S, x, par): return f"v_mfma_f32_32x32x8_bf16 {v(S,16)}, {v(K2,2)}, {v(QF+8*x+4+2*par,2)}, {v(S,16)}"
    def PV(x, aa): return f"v_mfma_f32_32x32x16_bf16 {v(OA+16*x,16)}, {v(VB if aa else VA,4)}, {v(PP+4*aa,4)}, {v(OA+16*x,16)}"
    for r in rdK1(0) + rdK2(0) + rdV(VA, 0, 0): p.I(r)
    p.I(f"""
    s_mov_b32 s26, 0
    s_mov_b32 s25, {2*SLOT}
    s_mov_b32 s37, 0
    s_movk_i32 s39, {SLOT}
    s_waitcnt lgkmcnt(1)
    """)
    p.I(QK1(SX, 0)); p.I(QK2(SX, 0, 0))
    if DIAG:
        stamp(p, 4); cstamp(p, 5); p.I("s_waitcnt lgkmcnt(0)")
    p.I("s_nop 7"); p.I("s_nop 3")
    p.R(".p2align 6")
    p.L(f"{name}_loop")
    for ph in range(8):
        U, n = divmod(ph, 4)
        x = n & 1
        X = SX + 16 * (ph & 1); Y = SX + 16 * ((ph + 1) & 1)
        nx = (n + 1) & 1; npar = ((n + 1) >> 1) & 1
        lastU = (U == 1)
        def gap(g):
            e = [f"v_exp_f32 v{X+4*g+i}, v{X+4*g+i}" for i in range(4)]
            if g == 0: c = [f"v_cvt_pk_bf16_f32 v{PP+6+i}, v{Y+12+2*i}, v{Y+13+2*i}" for i in range(2)]
            else: c = [f"v_cvt_pk_bf16_f32 v{PP+2*(g-1)+i}, v{X+4*(g-1)+2*i}, v{X+4*(g-1)+2*i+1}" for i in range(2)]
            for ins in (e[0], c[0], e[1], e[2], c[1], e[3]): p.I(ins)
        if PRIOS and ph in PRIOS: p.I(f"s_setprio {PRIOS[ph]}")
        gap(0)
        if n in (1, 3): p.I(f"s_waitcnt lgkmcnt({1 if n == 1 else 2})")
        p.I(QK1(Y, nx))
        if n == 0:
            for r in rdK1(2 * U + 1): p.I(r)
        if n == 2:
            if lastU:
                p.I(f"""
                s_waitcnt vmcnt(0)
                s_barrier
                s_cmp_eq_u32 s37, {2*SLOT}
                s_cselect_b32 s27, {(-2*SLOT) & 0xffffffff:#x}, s39
                s_add_u32 s37, s37, s27
                v_add_u32 v{AK1}, s27, v{AK1}
                v_add_u32 v{AK2}, s27, v{AK2}
                """)
                for r in rdK1(0): p.I(r)
            else:
                for r in rdK1(2 * U + 2): p.I(r)
        gap(1)
        if n == 3: p.I("s_waitcnt lgkmcnt(1)")
        p.I(QK2(Y, nx, npar))
        if n == 2:
            for r in rdK2(0 if lastU else U + 1): p.I(r)
            if lastU:
                p.I(f"""
                s_cmp_ge_u32 s26, {NCH-2}
                s_cbranch_scc1 {name}_nodma
                """)
                dma("s25")
                p.I(f"""
                s_cmp_eq_u32 s25, {2*SLOT}
                s_cselect_b32 s33, {(-2*SLOT) & 0xffffffff:#x}, s39
                s_add_u32 s25, s25, s33
                """)
                p.L(f"{name}_nodma")
        gap(2)
        if n in (1, 3): p.I("s_waitcnt lgkmcnt(0)")
        p.I(PV(1 - x, 1))
        if n in (0, 2):
            for r in rdV(VB, 2 * U + n // 2, 1): p.I(r)
        gap(3)
        if n in (0, 2): p.I(f"s_waitcnt lgkmcnt({2 if n == 0 else 3})")
        p.I(PV(x, 0))
        if n == 1:
            for r in rdV(VA, 2 * U + 1, 0): p.I(r)
        if n == 3:
            if lastU:
                p.I(f"v_add_u32 v{AV}, s27, v{AV}")
                for r in rdV(VA, 0, 0): p.I(r)
            else:
                for r in rdV(VA, 2 * U + 2, 0): p.I(r)
    p.I(f"""
    s_add_u32 s26, s26, 1
    s_cmp_lt_u32 s26, {NCH}
    s_cbranch_scc1 {name}_loop
    """)
    Y = SX + 16
    for i in range(2): p.I(f"v_cvt_pk_bf16_f32 v{PP+6+i}, v{Y+12+2*i}, v{Y+13+2*i}")
    p.I(PV(1, 1))
    stamp(p, 2); cstamp(p, 6)
    p.I(f"""
    s_waitcnt lgkmcnt(0)
    s_add_u32 s33, s24, {2*SLOT}
    s_xor_b32 s34, s14, 4
    s_mul_i32 s34, s34, 3072
    s_add_u32 s34, s34, {2*SLOT}
    v_add_u32 v{T0+8}, s33, v{VOFF}
    v_add_u32 v{T0+9}, s34, v{VOFF}
    s_cmp_eq_u32 s16, 0
    s_cbranch_scc1 {name}_k0
    """)
    for i in range(3): p.I(f"ds_write_b128 v{T0+8}, {v(OA+4*i,4)} offset:{1024*i}")
    p.I("s_nop 7")
    for i in range(12): p.I(f"v_mov_b32 v{SX+i}, v{OA+16+i}")
    for i in range(8): p.I(f"v_mov_b32 v{QF+i}, v{QF+8+i}")
    p.I(f"s_branch {name}_kj")
    p.L(f"{name}_k0")
    p.I("s_nop 7")
    for i in range(3): p.I(f"ds_write_b128 v{T0+8}, {v(OA+16+4*i,4)} offset:{1024*i}")
    for i in range(12): p.I(f"v_mov_b32 v{SX+i}, v{OA+i}")
    p.L(f"{name}_kj")
    p.I("s_waitcnt lgkmcnt(0)")
    p.I("s_barrier")
    for i in range(3): p.I(f"ds_read_b128 {v(SX+16+4*i,4)}, v{T0+9} offset:{1024*i}")
    p.I(f"""
    s_lshl_b32 s33, s16, 9
    v_add_u32 v{T0+2}, s33, v{T0+2}
    v_add_u32 v{T0+3}, s33, v{T0+3}
    s_lshl_b32 s34, s31, 15
    s_add_u32 s34, s34, {WS_O}
    s_add_u32 s35, s35, {WS_O}
    s_waitcnt lgkmcnt(0)
    """)
    for i in range(12): p.I(f"v_add_f32 v{OA+i}, v{SX+i}, v{SX+16+i}")
    p.L(f"{name}_fin")
    p.I(f"""
    v_mov_b32 v{T0+10}, v{OA+8}
    v_mov_b32 v{T0+11}, v{OA+8}
    v_permlane32_swap_b32 v{T0+10}, v{T0+11}
    """)
    p.I(f"""
    v_rcp_f32 v{T0+10}, v{T0+11}
    v_max3_f32 v{T0+12}, |v{OA}|, |v{OA+1}|, |v{OA+2}|
    v_max3_f32 v{T0+13}, |v{OA+3}|, |v{OA+4}|, |v{OA+5}|
    v_max3_f32 v{T0+14}, |v{OA+6}|, |v{OA+7}|, |v{OA+8}|
    v_max3_f32 v{T0+15}, |v{OA+9}|, |v{OA+10}|, |v{OA+11}|
    v_max3_f32 v{T0+12}, v{T0+12}, v{T0+13}, v{T0+14}
    v_max_f32 v{T0+12}, v{T0+12}, v{T0+15}
    s_mov_b32 s33, 0x1f800000
    s_mov_b32 s36, 0x5f800000
    s_mov_b32 s38, 0x7f000000
    v_cmp_le_f32 s[40:41], s33, v{T0+11}
    v_cmp_ge_f32 s[42:43], s36, v{T0+11}
    v_cmp_ge_f32 vcc, s38, v{T0+12}
    s_and_b64 s[40:41], s[40:41], s[42:43]
    s_and_b64 s[40:41], s[40:41], vcc
    s_cmp_eq_u64 s[40:41], -1
    s_cbranch_scc1 {name}_ok
    s_cmp_eq_u32 s26, 99
    s_cbranch_scc0 {name}_slow
    """)
    p.L(f"{name}_ok")
    for i in range(12): p.I(f"v_mul_f32 v{OA+i}, v{OA+i}, v{T0+10}")
    for i in range(6): p.I(f"v_cvt_pk_bf16_f32 v{SX+i}, v{OA+2*i}, v{OA+2*i+1}")
    p.I(f"""
    buffer_store_dwordx4 {v(SX,4)}, v{T0+3}, {W}, s34 offen
    s_mov_b32 exec_hi, 0
    buffer_store_dwordx2 {v(SX+4,2)}, v{T0+2}, {W}, s35 offen
    """)
    if DIAG: p.I("s_waitcnt vmcnt(0)")
    stamp(p, 3)
    stamp_flush(p, 7, WSRD, 14, kidx=1)
    p.I("s_endpgm")

    p.L(f"{name}_slow")
    GK1, GK2, GV, MX = T0+8, T0+9, T0+12, T0+13
    p.I(f"""
    v_lshlrev_b32 v{GK1}, 15, v{T0+1}
    v_lshl_add_u32 v{GK1}, v{T0}, 4, v{GK1}          ; h*32768 + key*16
    v_lshlrev_b32 v{GK2}, 4, v{T0}
    v_mul_u32_u24 v{GV}, 320, v{T0+1}
    v_lshl_add_u32 v{GV}, v{T0}, 4, v{GV}
    v_mov_b32 v{MX}, 0xff800000
    s_mov_b32 s27, 0                                 ; pass
    """)
    for i in range(16): p.I(f"v_mov_b32 v{OA+i}, 0")
    p.L(f"{name}_spass")
    p.I(f"""
    s_add_u32 s20, s31, 80
    s_lshl_b32 s20, s20, 15
    s_add_u32 s21, s30, 80
    s_lshl_b32 s21, s21, 15
    s_lshl_b32 s33, s29, 3
    s_add_u32 s21, s21, s33
    s_mul_i32 s22, s12, 81920
    s_add_u32 s22, s22, {WS_V}
    s_mov_b32 s26, 0
    """)
    p.L(f"{name}_sloop")
    p.I(f"""
    buffer_load_dwordx4 {v(K1,4)}, v{GK1}, {W}, s20 offen
    buffer_load_dwordx2 {v(K2,2)}, v{GK2}, {W}, s21 offen
    s_mov_b64 exec, s[18:19]
    buffer_load_dwordx4 {v(VA,4)}, v{GV}, {W}, s22 offen
    buffer_load_dwordx4 {v(VB,4)}, v{GV}, {W}, s22 offen offset:640
    s_mov_b64 exec, -1
    s_waitcnt vmcnt(0)
    """)
    p.I(QK1(SX, 0)); p.I(QK2(SX, 0, 0))
    p.I(f"""
    s_nop 7
    s_nop 7
    s_cmp_eq_u32 s27, 0
    s_cbranch_scc0 {name}_sp2
    """)
    for i in range(8): p.I(f"v_max3_f32 v{MX}, v{MX}, v{SX+2*i}, v{SX+2*i+1}")
    p.I(f"s_branch {name}_snext")
    p.L(f"{name}_sp2")
    for i in range(16): p.I(f"v_sub_f32 v{SX+i}, v{SX+i}, v{MX}")
    for i in range(16): p.I(f"v_exp_f32 v{SX+i}, v{SX+i}")
    for i in range(8): p.I(f"v_cvt_pk_bf16_f32 v{PP+i}, v{SX+2*i}, v{SX+2*i+1}")
    p.I(PV(0, 0)); p.I(PV(0, 1))
    p.L(f"{name}_snext")
    p.I(f"""
    s_add_u32 s20, s20, 512
    s_add_u32 s21, s21, 512
    s_add_u32 s22, s22, 1280
    s_add_u32 s26, s26, 1
    s_nop 7
    s_cmp_lt_u32 s26, 64
    s_cbranch_scc1 {name}_sloop
    s_cmp_eq_u32 s27, 1
    s_cbranch_scc1 {name}_sdone
    v_mov_b32 v{T0+14}, v{MX}
    v_mov_b32 v{T0+15}, v{MX}
    v_permlane32_swap_b32 v{T0+14}, v{T0+15}
    v_max3_f32 v{MX}, v{MX}, v{T0+14}, v{T0+15}
    s_mov_b32 s27, 1
    s_branch {name}_spass
    """)
    p.L(f"{name}_sdone")
    p.I(f"""
    s_mov_b32 s26, 99
    s_nop 7
    s_nop 3
    s_branch {name}_fin
    """)

def gen_k2(p, name="attn_kernel"):
    p.R(f".p2align 8\n.type {name},@function")
    p.L(name)
    stamp(p, 0)
    p.I(f"""
    s_load_dwordx2 s[4:5], s[0:1], {KA['ws']}
    s_cmp_ge_u32 s2, 256
    s_cbranch_scc1 {name}_exit
    v_lshrrev_b32 v1, 6, v0
    v_and_b32 v2, 63, v0
    v_readfirstlane_b32 s14, v1
    s_waitcnt lgkmcnt(0)
    """)
    srd(p, 8, 4, WS_SIZE)
    attn_body(p, name)
    p.L(f"{name}_exit")
    p.I("s_endpgm")
    return dict(name=name, grid=256, block=512, lds=3*SLOT, vgpr=128)
```

```python
from engine import *
import struct, math
def f2u(x): return struct.unpack("<I", struct.pack("<f", x))[0]
LOG2E = f2u(math.log2(math.e)); INV2PI = f2u(1.0 / (2 * math.pi))
E_BYTES = 32 * 640 * 8
BUPRIO = int(os.environ.get('BUPRIO', '0'))

def cmul(p, dr, di, ar, ai, br, bi, t):
    p.I(f"""
    v_mul_f32 v{t}, v{ar}, v{br}
    v_mul_f32 v{t+1}, v{ar}, v{bi}
    v_fma_f32 v{t}, -v{ai}, v{bi}, v{t}
    v_fma_f32 v{di}, v{ai}, v{br}, v{t+1}
    v_mov_b32 v{dr}, v{t}
    """)
def cfma(p, dr, di, ar, ai, br, bi, cr, ci, t):
    p.I(f"""
    v_fma_f32 v{t}, v{ar}, v{br}, v{cr}
    v_fma_f32 v{t+1}, v{ar}, v{bi}, v{ci}
    v_fma_f32 v{t}, -v{ai}, v{bi}, v{t}
    v_fma_f32 v{di}, v{ai}, v{br}, v{t+1}
    v_mov_b32 v{dr}, v{t}
    """)

def kc_loader_voff(p, dst, vrow0, vL, step_rows_bytes, t):
    p.I(f"""
    v_lshrrev_b32 v{t}, 4, v{vL}
    v_and_b32 v{t+1}, 7, v{vL}
    v_xor_b32 v{t}, v{t}, v{t+1}
    v_xor_b32 v{t+1}, 4, v{t}
    v_lshl_add_u32 v{dst}, v{t}, 4, v{vrow0}
    v_lshl_add_u32 v{dst+1}, v{t+1}, 4, v{vrow0}
    v_add_u32 v{dst+1}, {step_rows_bytes-1024}, v{dst+1}
    v_add_u32 v{dst+2}, {2*(step_rows_bytes-1024)}, v{dst}
    v_add_u32 v{dst+3}, {2*(step_rows_bytes-1024)}, v{dst+1}
    """)

def bu_body(p, name, sid, WSRD=8):
    W = f"s[{WSRD}:{WSRD+3}]"
    E = Engine(Opnd("kc", 128), Opnd("kc", 128), 10, NU=5, early=True, P0=3)
    p.I(f"""
    s_load_dwordx2 s[16:17], s[0:1], {KA['A_x']}
    s_load_dwordx4 s[20:23], s[0:1], {KA['Bre']}
    s_load_dwordx4 s[24:27], s[0:1], {KA['Lre']}
    s_load_dwordx2 s[28:29], s[0:1], {KA['logdt']}
    s_and_b32 s30, s{sid}, 7
    s_lshr_b32 s31, s{sid}, 3
    s_and_b32 s12, s30, 3
    s_lshl_b32 s12, s12, 2
    s_and_b32 s13, s31, 3
    s_add_u32 s12, s12, s13          ; tm
    s_lshr_b32 s13, s30, 2
    s_mul_i32 s13, s13, 5
    s_lshr_b32 s31, s31, 2
    s_add_u32 s13, s13, s31          ; sn
    s_setprio {BUPRIO}
    s_cmp_lt_u32 s14, 4
    s_cbranch_scc1 {name}_cons
    """)
    p.I(f"""
    s_sub_u32 s15, s14, 4            ; lw
    s_lshl_b32 s33, s15, 12
    s_lshr_b32 s30, s15, 1
    s_and_b32 s31, s15, 1
    s_lshl_b32 s34, s12, 7
    s_lshl_b32 s35, s30, 6
    s_add_u32 s34, s34, s35
    s_lshl_b32 s35, s31, 4
    s_add_u32 s34, s34, s35          ; t base
    s_mul_i32 s34, s34, 1280
    v_lshrrev_b32 v3, 5, v2
    v_bfe_u32 v12, v2, 3, 2
    v_lshl_add_u32 v3, v3, 5, v12
    v_mul_u32_u24 v3, 1280, v3
    v_add_u32 v3, s34, v3
    """)
    kc_loader_voff(p, 4, 3, 2, 4 * 1280, 12)
    p.I(f"""
    s_lshl_b32 s34, s13, 6
    s_lshl_b32 s35, s30, 5
    s_add_u32 s34, s34, s35
    s_mul_i32 s34, s34, 1280
    v_lshrrev_b32 v3, 3, v2
    v_mul_u32_u24 v3, 1280, v3
    v_add_u32 v3, s34, v3
    """)
    kc_loader_voff(p, 8, 3, 2, 8 * 1280, 12)
    p.I(f"""
    s_waitcnt lgkmcnt(0)
    s_cmp_eq_u32 s31, 0
    s_cselect_b32 s18, s20, s22
    s_cselect_b32 s19, s21, s23
    """)
    srd(p, 36, 16, 2048*640*2)
    srd(p, 40, 18, 640*640*2)
    def issue(st, which, off):
        p.I(f"s_add_u32 m0, s33, {off}")
        p.I(f"s_movk_i32 s32, {st*128}")
        for i in range(4):
            p.I(f"buffer_load_dwordx4 v{4+4*which+i}, s[{36+4*which}:{39+4*which}], s32 offen offset:{i*1024} lds")
    E.loader(p, issue)
    p.I("s_endpgm")

    p.L(f"{name}_cons")
    AD = 4; FR = 20; ACC = 52; CO = 116
    assert AD + E.naddr() <= FR and FR + 2 * E.fr_per <= ACC
    LA, LB, CR, CI, L32R, L32I, L64R, L64I, VP, VH = range(CO, CO + 10)
    T = FR
    p.I(f"""
    s_and_b32 s30, s14, 1            ; wm
    s_lshr_b32 s31, s14, 1           ; wn
    s_lshl_b32 s34, s13, 6
    s_lshl_b32 s35, s31, 5
    s_add_u32 s34, s34, s35
    v_and_b32 v{VP}, 31, v2
    v_add_u32 v{VP}, s34, v{VP}      ; state p
    v_lshrrev_b32 v{VH}, 5, v2
    v_lshlrev_b32 v{T+8}, 1, v{VP}
    s_waitcnt lgkmcnt(0)
    global_load_ushort v{T+9}, v{T+8}, s[24:25]
    global_load_ushort v{T+10}, v{T+8}, s[26:27]
    global_load_ushort v{T+11}, v{T+8}, s[28:29]
    """)
    E.cons_setup(p, AD, 2, 30, 31, T, 32)
    for i in range(64): p.I(f"v_mov_b32 v{ACC+i}, 0")
    lre, lim, dt = T + 9, T + 10, T + 11
    p.I(f"""
    s_mov_b32 s32, {LOG2E:#x}
    s_mov_b32 s33, {INV2PI:#x}
    s_waitcnt vmcnt(0)
    v_lshlrev_b32 v{lre}, 16, v{lre}
    v_lshlrev_b32 v{lim}, 16, v{lim}
    v_lshlrev_b32 v{dt}, 16, v{dt}
    v_mul_f32 v{dt}, s32, v{dt}
    v_exp_f32 v{dt}, v{dt}
    v_cvt_pk_bf16_f32 v{dt}, v{dt}, v{dt}
    v_lshlrev_b32 v{dt}, 16, v{dt}
    v_mul_f32 v{T}, v{dt}, v{lre}
    v_mul_f32 v{T+1}, v{dt}, v{lim}
    v_mul_f32 v{T}, s32, v{T}
    v_mul_f32 v{T+1}, s33, v{T+1}
    v_exp_f32 v{T}, v{T}                      ; magnitude
    v_fract_f32 v{T+1}, v{T+1}
    v_cos_f32 v{T+2}, v{T+1}
    v_sin_f32 v{T+3}, v{T+1}
    v_mul_f32 v{LA}, v{T}, v{T+2}
    v_mul_f32 v{LB}, v{T}, v{T+3}
    v_add_f32 v{T+4}, -1.0, v{LA}             ; a-1
    v_mul_f32 v{T+5}, v{lre}, v{lre}
    v_fma_f32 v{T+5}, v{lim}, v{lim}, v{T+5}
    v_rcp_f32 v{T+5}, v{T+5}
    v_mul_f32 v{CR}, v{T+4}, v{lre}
    v_fma_f32 v{CR}, v{LB}, v{lim}, v{CR}
    v_mul_f32 v{CI}, v{LB}, v{lre}
    v_fma_f32 v{CI}, -v{T+4}, v{lim}, v{CI}
    v_mul_f32 v{CR}, v{CR}, v{T+5}
    v_mul_f32 v{CI}, v{CI}, v{T+5}
    """)
    cmul(p, L32R, L32I, LA, LB, LA, LB, T)
    for _ in range(4): cmul(p, L32R, L32I, L32R, L32I, L32R, L32I, T)
    cmul(p, L64R, L64I, L32R, L32I, L32R, L32I, T)
    stamp(p, 1)
    if DIAG: p.I("s_waitcnt lgkmcnt(0)")
    E.consumer(p, AD, FR, ACC, True, 32, f"{name}_loop")
    p.I("s_setprio 3")
    stamp(p, 2)
    RE = lambda s: ACC + s
    IM = lambda s: ACC + 32 + s
    ER, EI, ELR, ELI = 4, 5, 6, 7
    t0 = 8
    p.I("s_nop 7"); p.I("s_nop 3")
    p.I(f"v_mov_b32 v{ER}, v{RE(0)}"); p.I(f"v_mov_b32 v{EI}, v{IM(0)}")
    er, ei, nr, ni = ER, EI, t0, t0 + 1
    for s_ in range(1, 32):
        p.I(f"""
        v_fma_f32 v{nr}, v{LA}, v{er}, v{RE(s_)}
        v_fma_f32 v{ni}, v{LA}, v{ei}, v{IM(s_)}
        v_fma_f32 v{nr}, -v{LB}, v{ei}, v{nr}
        v_fma_f32 v{ni}, v{LB}, v{er}, v{ni}
        """)
        er, ei, nr, ni = nr, ni, er, ei
    p.I(f"""
    v_mov_b32 v{ELR}, v{er}
    v_mov_b32 v{ELI}, v{ei}
    v_mov_b32 v{10}, v{er}
    v_mov_b32 v{11}, v{ei}
    v_permlane32_swap_b32 v{ELR}, v{10}
    v_permlane32_swap_b32 v{ELI}, v{11}
    """)
    cfma(p, 12, 13, L32R, L32I, ELR, ELI, 10, 11, 14)
    p.I(f"""
    s_lshl_b32 s34, s12, 1
    s_add_u32 s34, s34, s30          ; cidx
    s_add_u32 s36, s4, {WS_E}
    s_addc_u32 s37, s5, 0
    s_and_b32 s37, s37, 0xffff
    s_mov_b32 s38, {E_BYTES}
    s_mov_b32 s39, 0x00020000
    s_mul_i32 s35, s34, 5120
    v_lshl_add_u32 v16, v{VP}, 3, s35
    s_mov_b32 exec_hi, 0
    buffer_store_dwordx2 v[12:13], v16, s[36:39], 0 offen sc1
    s_mov_b64 exec, -1
    v_mul_u32_u24 v17, {16*5120}, v{VH}
    v_add_u32 v17, v17, v16
    v_subrev_u32 v17, {32*5120}, v17           ; j = cidx-32+16h
    """)
    G = FR
    def gather():
        p.I(f"v_mov_b32 v18, v17")
        for k in range(16):
            p.I(f"buffer_load_dwordx2 {v(G+2*k,2)}, v18, s[36:39], 0 offen sc1")
            if k < 15: p.I(f"v_add_u32 v18, 5120, v18")
    gather()
    for s_ in range(32):
        p.I(f"""
        v_mul_f32 v14, v{CR}, v{RE(s_)}
        v_mul_f32 v15, v{CR}, v{IM(s_)}
        v_fma_f32 v14, -v{CI}, v{IM(s_)}, v14
        v_fma_f32 v{IM(s_)}, v{CI}, v{RE(s_)}, v15
        v_mov_b32 v{RE(s_)}, v14
        """)
    cmul(p, 8, 9, L64R, L64I, L64R, L64I, 14)
    for _ in range(3): cmul(p, 8, 9, 8, 9, 8, 9, 14)
    p.I("s_mov_b32 s35, 0")
    p.L(f"{name}_poll")
    p.I("s_waitcnt vmcnt(0)")
    p.I(f"v_max3_u32 v14, v{G}, v{G+1}, v{G+2}")
    for k in range(3, 31, 2): p.I(f"v_max3_u32 v14, v14, v{G+k}, v{G+k+1}")
    p.I(f"v_max_u32 v14, v14, v{G+31}")
    p.I(f"""
    v_cmp_eq_u32 vcc, -1, v14
    s_cmp_eq_u64 vcc, 0
    s_cbranch_scc1 {name}_got
    s_add_u32 s35, s35, 1
    s_cmp_gt_u32 s35, 20000
    s_cbranch_scc1 {name}_got
    s_sleep 2
    """)
    gather()
    p.I(f"s_branch {name}_poll")
    p.L(f"{name}_got")
    stamp(p, 3)
    hr, hi, nr, ni = G, G + 1, 10, 11
    for k in range(1, 16):
        p.I(f"""
        v_fma_f32 v{nr}, v{L64R}, v{hr}, v{G+2*k}
        v_fma_f32 v{ni}, v{L64R}, v{hi}, v{G+2*k+1}
        v_fma_f32 v{nr}, -v{L64I}, v{hi}, v{nr}
        v_fma_f32 v{ni}, v{L64I}, v{hr}, v{ni}
        """)
        hr, hi, nr, ni = (nr, ni, 12, 13) if k == 1 else (nr, ni, hr, hi)
    p.I(f"""
    v_mov_b32 v16, v{hr}
    v_mov_b32 v17, v{hi}
    v_mov_b32 v18, v{hr}
    v_mov_b32 v19, v{hi}
    v_permlane32_swap_b32 v16, v18
    v_permlane32_swap_b32 v17, v19
    """)
    cfma(p, 10, 11, 8, 9, 16, 17, 18, 19, 14)
    cfma(p, 12, 13, L32R, L32I, 10, 11, ELR, ELI, 14)
    p.I(f"""
    v_cmp_eq_u32 vcc, 0, v{VH}
    v_cndmask_b32 v10, v12, v10, vcc
    v_cndmask_b32 v11, v13, v11, vcc
    """)
    cmul(p, 10, 11, 10, 11, CR, CI, 14)
    p.I(f"""
    s_lshl_b32 s35, s34, 3
    s_mul_i32 s35, s35, 20480
    s_add_u32 s35, s35, {WS_H}
    v_mul_u32_u24 v16, {4*20480}, v{VH}
    v_lshl_add_u32 v16, v{VP}, 4, v16
    """)
    pr, pi = 10, 11
    for q in range(4):
        for s_ in range(8 * q, 8 * q + 8):
            p.I(f"""
            v_fma_f32 v{RE(s_)}, v{LA}, v{pr}, v{RE(s_)}
            v_fma_f32 v{IM(s_)}, v{LA}, v{pi}, v{IM(s_)}
            v_fma_f32 v{RE(s_)}, -v{LB}, v{pi}, v{RE(s_)}
            v_fma_f32 v{IM(s_)}, v{LB}, v{pr}, v{IM(s_)}
            """)
            pr, pi = RE(s_), IM(s_)
        o = FR + 8 * q
        for j in range(4):
            p.I(f"v_cvt_pk_bf16_f32 v{o+j}, v{RE(8*q+2*j)}, v{RE(8*q+2*j+1)}")
            p.I(f"v_cvt_pk_bf16_f32 v{o+4+j}, -v{IM(8*q+2*j)}, -v{IM(8*q+2*j+1)}")
        p.I(f"buffer_store_dwordx4 {v(o,4)}, v16, {W}, s35 offen")
        p.I(f"s_add_u32 s35, s35, 10240")
        p.I(f"buffer_store_dwordx4 {v(o+4,4)}, v16, {W}, s35 offen")
        p.I(f"s_add_u32 s35, s35, 10240")
    if DIAG: p.I("s_waitcnt vmcnt(0)")
    stamp(p, 4)
    stamp_flush(p, 5, WSRD, 14, kidx=1)
    p.I("s_endpgm")
    return E

def gen_k2full(p, name="attn_kernel"):
    import k2_attn
    p.R(f".p2align 8\n.type {name},@function")
    p.L(name)
    stamp(p, 0)
    p.I(f"""
    s_load_dwordx2 s[4:5], s[0:1], {KA['ws']}
    s_cmp_ge_u32 s2, 416
    s_cbranch_scc1 {name}_exit
    v_lshrrev_b32 v1, 6, v0
    v_and_b32 v2, 63, v0
    v_readfirstlane_b32 s14, v1
    s_waitcnt lgkmcnt(0)
    """)
    srd(p, 8, 4, WS_SIZE)
    p.I(f"""
    s_cmp_ge_u32 s2, 256
    s_cbranch_scc1 {name}_bu
    """)
    k2_attn.attn_body(p, name)
    p.L(f"{name}_bu")
    p.I("s_sub_u32 s6, s2, 256")
    bu_body(p, name + "_b", 6)
    p.L(f"{name}_exit")
    p.I("s_endpgm")
    return dict(name=name, grid=416, block=512, lds=81920, vgpr=128)
```

```python
from engine import *
from k2_bu import kc_loader_voff

def y_body(p, name, sid, E, WSRD=8, OSRD=12, end=True):
    W = f"s[{WSRD}:{WSRD+3}]"; O = f"s[{OSRD}:{OSRD+3}]"
    p.I(f"""
    s_load_dwordx4 s[20:23], s[0:1], {KA['Cre']}
    s_load_dwordx2 s[24:25], s[0:1], {KA['A_x']}
    s_load_dwordx2 s[26:27], s[0:1], {KA['Dskip']}
    s_and_b32 s30, s{sid}, 7
    s_lshr_b32 s31, s{sid}, 3
    s_and_b32 s16, s30, 3
    s_lshl_b32 s16, s16, 2
    s_and_b32 s17, s31, 3
    s_add_u32 s16, s16, s17          ; tm
    s_lshr_b32 s17, s30, 2
    s_mul_i32 s17, s17, 5
    s_lshr_b32 s31, s31, 2
    s_add_u32 s17, s17, s31
    s_cmp_lt_u32 s14, 4
    s_cbranch_scc1 {name}_cons
    """)
    p.I(f"""
    s_sub_u32 s15, s14, 4
    s_lshl_b32 s33, s15, 12
    s_lshl_b32 s29, s15, 11
    s_lshl_b32 s34, s16, 4
    s_lshl_b32 s35, s15, 2
    s_add_u32 s34, s34, s35
    s_mul_i32 s34, s34, 20480
    s_add_u32 s34, s34, {WS_H}
    """)
    for i in range(4):
        p.I(f"v_xor_b32 v3, {i<<2}, v2")
        p.I(f"v_lshl_add_u32 v{4+i}, v3, 4, s34")
        if i: p.I(f"v_add_u32 v{4+i}, {i*(20480-1024)}, v{4+i}")
    p.I(f"""
    s_lshl_b32 s34, s17, 6
    s_lshr_b32 s35, s15, 1
    s_lshl_b32 s35, s35, 5
    s_add_u32 s34, s34, s35
    s_and_b32 s35, s15, 1
    s_lshl_b32 s35, s35, 3
    s_add_u32 s34, s34, s35
    s_mul_i32 s34, s34, 1280
    v_lshrrev_b32 v3, 5, v2
    v_bfe_u32 v12, v2, 3, 2
    v_lshl_add_u32 v3, v3, 4, v12
    v_mul_u32_u24 v3, 1280, v3
    v_add_u32 v3, s34, v3
    """)
    kc_loader_voff(p, 8, 3, 2, 4 * 1280, 12)
    p.I("s_waitcnt lgkmcnt(0)")
    srd(p, 36, 20, 640*640*2)
    srd(p, 40, 22, 640*640*2)
    def issue(st, which, off):
        if which == 0:
            p.I(f"s_add_u32 m0, s33, {off}")
            p.I(f"s_movk_i32 s32, {st*1024}")
            for i in range(4):
                p.I(f"buffer_load_dwordx4 v{4+i}, {W}, s32 offen offset:{i*1024} lds")
        else:
            p.I(f"s_add_u32 m0, s29, {off}")
            p.I(f"s_movk_i32 s32, {(st%10)*128}")
            b = 36 if st < 10 else 40
            for i in range(2):
                p.I(f"buffer_load_dwordx4 v{8+i}, s[{b}:{b+3}], s32 offen offset:{i*1024} lds")
    E.loader(p, issue)
    p.I("s_endpgm")
    p.L(f"{name}_cons")
    AD = 4; FR = 28; ACC = 80; XA = 112
    assert AD + E.naddr() <= FR and FR + E.NB * E.fr_per <= ACC
    T = FR
    p.I(f"""
    s_and_b32 s30, s14, 1            ; wm
    s_lshr_b32 s31, s14, 1           ; wn
    s_lshl_b32 s34, s16, 7
    s_lshl_b32 s35, s30, 6
    s_add_u32 s34, s34, s35          ; t base
    s_lshl_b32 s35, s17, 6
    s_lshl_b32 s32, s31, 5
    s_add_u32 s35, s35, s32          ; d base
    v_and_b32 v{XA}, 31, v2
    v_add_u32 v{XA}, s34, v{XA}      ; t
    v_lshrrev_b32 v{XA+1}, 5, v2
    v_lshl_add_u32 v{XA+1}, v{XA+1}, 4, s35   ; d0
    v_lshlrev_b32 v{XA+2}, 1, v{XA+1}
    v_mul_u32_u24 v{XA+3}, 1280, v{XA}
    v_add_u32 v{XA+3}, v{XA+3}, v{XA+2}
    v_add_u32 v{XA+4}, {32*1280}, v{XA+3}
    s_waitcnt lgkmcnt(0)
    global_load_dwordx4 {v(T+8,4)}, v{XA+2}, s[26:27]
    global_load_dwordx4 {v(T+12,4)}, v{XA+2}, s[26:27] offset:16
    global_load_dwordx4 {v(T+16,4)}, v{XA+3}, s[24:25]
    global_load_dwordx4 {v(T+20,4)}, v{XA+3}, s[24:25] offset:16
    global_load_dwordx4 {v(T+24,4)}, v{XA+4}, s[24:25]
    global_load_dwordx4 {v(T+28,4)}, v{XA+4}, s[24:25] offset:16
    v_mul_u32_u24 v{XA+5}, 5120, v{XA}
    v_lshl_add_u32 v{XA+5}, v{XA+1}, 2, v{XA+5}
    """)
    E.cons_setup(p, AD, 2, 30, 31, T, 32)
    p.I("s_waitcnt vmcnt(0)")
    for j in range(8):
        p.I(f"v_lshlrev_b32 v{T}, 16, v{T+8+j}")
        p.I(f"v_and_b32 v{T+1}, 0xffff0000, v{T+8+j}")
        for u in range(2):
            x = T + 16 + 8 * u + j
            d = ACC + 16 * u + 2 * j
            p.I(f"""
            v_lshlrev_b32 v{T+2}, 16, v{x}
            v_and_b32 v{T+3}, 0xffff0000, v{x}
            v_mul_f32 v{T+2}, v{T}, v{T+2}
            v_mul_f32 v{T+3}, v{T+1}, v{T+3}
            v_cvt_pk_bf16_f32 v{T+2}, v{T+2}, v{T+3}
            v_lshlrev_b32 v{T+3}, 16, v{T+2}
            v_and_b32 v{T+2}, 0xffff0000, v{T+2}
            v_mul_f32 v{d}, 0.5, v{T+3}
            v_mul_f32 v{d+1}, 0.5, v{T+2}
            """)
    stamp(p, 1)
    if DIAG: p.I("s_waitcnt lgkmcnt(0)")
    E.consumer(p, AD, FR, ACC, False, 32, f"{name}_loop")
    stamp(p, 2)
    p.I("s_mov_b32 s32, 163840")
    for u in range(2):
        for i in range(16): p.I(f"v_add_f32 v{ACC+16*u+i}, v{ACC+16*u+i}, v{ACC+16*u+i}")
        for q in range(4):
            p.I(f"buffer_store_dwordx4 {v(ACC+16*u+4*q,4)}, v{XA+5}, {O}, {'s32' if u else '0'} offen offset:{16*q}")
    if DIAG: p.I("s_waitcnt vmcnt(0)")
    stamp(p, 3)
    stamp_flush(p, 4, WSRD, 14, kidx=2)
    p.I("s_endpgm")

def o_body(p, name, sid, E, WSRD=8, OSRD=12):
    W = f"s[{WSRD}:{WSRD+3}]"; O = f"s[{OSRD}:{OSRD+3}]"
    p.I(f"""
    s_load_dwordx2 s[20:21], s[0:1], {KA['wo']}
    s_and_b32 s30, s{sid}, 7
    s_lshr_b32 s31, s{sid}, 3
    s_lshl_b32 s16, s30, 1
    s_and_b32 s17, s31, 1
    s_add_u32 s16, s16, s17          ; tm
    s_lshr_b32 s17, s31, 1           ; nn 0..4
    s_cmp_lt_u32 s14, 4
    s_cbranch_scc1 {name}_cons
    """)
    p.I(f"""
    s_sub_u32 s15, s14, 4
    s_lshl_b32 s33, s15, 12
    s_lshl_b32 s34, s15, 16
    s_lshl_b32 s35, s16, 11
    s_add_u32 s34, s34, s35
    s_add_u32 s34, s34, {WS_O}
    v_lshl_add_u32 v4, v2, 4, s34
    v_mov_b32 v5, v4
    v_add_u32 v6, {32768-2048}, v4
    v_mov_b32 v7, v6
    s_lshl_b32 s34, s15, 4
    s_mul_i32 s34, s34, 1280
    s_lshl_b32 s35, s17, 8
    s_add_u32 s34, s34, s35
    v_lshrrev_b32 v12, 4, v2
    v_mul_u32_u24 v3, 1280, v12
    v_add_u32 v3, s34, v3
    v_and_b32 v13, 15, v2
    v_lshlrev_b32 v14, 2, v12
    v_xor_b32 v13, v13, v14
    v_lshl_add_u32 v8, v13, 4, v3
    v_add_u32 v9, {5120-1024}, v8
    v_add_u32 v10, {2*(5120-1024)}, v8
    v_add_u32 v11, {3*(5120-1024)}, v8
    s_waitcnt lgkmcnt(0)
    """)
    srd(p, 36, 20, 640*640*2)
    def issue(st, which, off):
        p.I(f"s_add_u32 m0, s33, {off}")
        p.I(f"s_mov_b32 s32, {st*8*32768 if which == 0 else st*64*1280}")
        for i in range(4):
            p.I(f"buffer_load_dwordx4 v{4+4*which+i}, {W if which == 0 else 's[36:39]'}, s32 offen offset:{i*1024} lds")
    E.loader(p, issue)
    p.I("s_endpgm")
    p.L(f"{name}_cons")
    AD = 4; FR = 28; ACC = 60; XA = 124
    assert AD + E.naddr() <= FR and FR + E.NB * E.fr_per <= ACC
    p.I(f"""
    s_and_b32 s30, s14, 1
    s_lshr_b32 s31, s14, 1
    s_lshl_b32 s34, s16, 7
    s_lshl_b32 s35, s30, 6
    s_add_u32 s34, s34, s35
    s_lshl_b32 s35, s17, 7
    s_lshl_b32 s32, s31, 6
    s_add_u32 s35, s35, s32
    s_add_u32 s35, s35, 640
    v_and_b32 v{XA}, 31, v2
    v_add_u32 v{XA}, s34, v{XA}
    v_lshrrev_b32 v{XA+1}, 5, v2
    v_lshl_add_u32 v{XA+1}, v{XA+1}, 3, s35
    v_mul_u32_u24 v{XA}, 5120, v{XA}
    v_lshl_add_u32 v{XA}, v{XA+1}, 2, v{XA}
    """)
    E.cons_setup(p, AD, 2, 30, 31, FR, 32)
    for i in range(64): p.I(f"v_mov_b32 v{ACC+i}, 0")
    stamp(p, 1)
    p.I("s_waitcnt lgkmcnt(0)")
    E.consumer(p, AD, FR, ACC, False, 32, f"{name}_loop")
    stamp(p, 2)
    p.I("s_mov_b32 s32, 163840")
    for t in range(2):
        for u in range(2):
            for q in range(4):
                p.I(f"buffer_store_dwordx4 {v(ACC+32*t+16*u+4*q,4)}, v{XA}, {O}, {'s32' if u else '0'} offen offset:{(32*t+16*(q>>1)+4*(q&1))*4}")
    if DIAG: p.I("s_waitcnt vmcnt(0)")
    stamp(p, 3)
    stamp_flush(p, 4, WSRD, 14, kidx=2)
    p.I("s_endpgm")

def gen_k3(p, name="outp_kernel"):
    EY = Engine(Opnd("tb", 128), Opnd("kc", 64), 20, NS=5, NB=4, P0=4, burst=1)
    EO = Engine(Opnd("fm", 128), Opnd("tr", 128), 10, NS=5, NB=2, P0=3, burst=1)
    p.R(f".p2align 8\n.type {name},@function")
    p.L(name)
    stamp(p, 0)
    p.I(f"""
    s_load_dwordx2 s[4:5], s[0:1], {KA['ws']}
    s_load_dwordx2 s[6:7], s[0:1], {KA['out']}
    s_cmp_ge_u32 s2, 240
    s_cbranch_scc1 {name}_exit
    v_lshrrev_b32 v1, 6, v0
    v_and_b32 v2, 63, v0
    v_readfirstlane_b32 s14, v1
    s_waitcnt lgkmcnt(0)
    """)
    srd(p, 8, 4, WS_SIZE)
    srd(p, 92, 6, OUT_BYTES)
    p.I(f"""
    s_cmp_ge_u32 s2, 160
    s_cbranch_scc1 {name}_o
    """)
    y_body(p, name + "_y", 2, EY, OSRD=92)
    p.L(f"{name}_o")
    p.I("s_sub_u32 s3, s2, 160")
    o_body(p, name + "_o", 3, EO, OSRD=92)
    p.L(f"{name}_exit")
    p.I("s_endpgm")
    return dict(name=name, grid=240, block=512, lds=max(EY.lds, EO.lds), vgpr=128)
```

```python
from gen import *
import functools, k2_attn, k2_bu, k3_out
build([functools.partial(k1_qkv.gen_k1, NS=5, burst=1), k2_attn.gen_k2 if os.environ.get('NOBU') else k2_bu.gen_k2full, k3_out.gen_k3], os.environ.get("OUT", "out.s"))
```

```python
from gen import *
import functools, k2_attn, k2_bu, k3_out
def nop_k(nm):
    def f(p):
        p.R(f".p2align 8\n.type {nm},@function"); p.L(nm); p.I("s_endpgm")
        return dict(name=nm, grid=256, block=256, lds=0, vgpr=8)
    return f
base = [functools.partial(k1_qkv.gen_k1, NS=5, burst=1), k2_bu.gen_k2full, k3_out.gen_k3]
build(base + [nop_k("nopa_kernel")], "v1.s")
build(base + [nop_k("nopa_kernel"), nop_k("nopb_kernel"), nop_k("nopc_kernel")], "v3.s")
build([nop_k("nopa_kernel")] + base, "v1f.s")
build(base, "v0.s")
```

```python
from asmlib import *
NAME = "concat_heads__ssm_conv_s5__softmax_full_mha__prompt"
KA = dict(A_x=0, Lre=8, Lim=16, Bre=24, Bim=32, Cre=40, Cim=48, logdt=56, Dskip=64, B_x=72, wqkv=80, wo=88, out=96, dbg=104, ws=112)
WS_QK = 0x000000
WS_V  = 0x500000
WS_O  = 0x780000
import os
OPS = int(os.environ.get('OPS_', 32768))
import os
HS = int(os.environ.get('HS', 21504))
WS_H  = 0x1000000
WS_E  = 0xF00000
FST = 4096 + 768
WS_F2 = 0xF40000
WS_F3 = 0xF60000
WS_GO = 0xF80000
WS_SIZE = 0x1600000
OUT_BYTES = 2048*1280*4

def srd(p, d, base, nbytes):
    p.I(f"s_mov_b32 s{d}, s{base}")
    p.I(f"s_and_b32 s{d+1}, s{base+1}, 0xffff")
    p.I(f"s_mov_b32 s{d+2}, {nbytes:#x}")
    p.I(f"s_mov_b32 s{d+3}, 0x00020000")

def mfma(p, d, A, B, C=None, k=16):
    n = 4 if k == 16 else 2
    c = "0" if C == 0 and C is not None and not isinstance(C, str) and False else None
    cs = v(d, 16) if C is None else C
    p.I(f"v_mfma_f32_32x32x{k}_bf16 {v(d,16)}, {v(A,n)}, {v(B,n)}, {cs}")

import os
DIAG = bool(int(os.environ.get("DIAG", "0")))
WS_DIAG = 0x1800000
if DIAG: WS_SIZE = 0x2000000
ST0 = 44
def stamp(p, idx):
    if DIAG: p.I(f"s_memrealtime s[{ST0+2*idx}:{ST0+2*idx+1}]")
def cstamp(p, idx):
    if DIAG: p.I(f"s_memtime s[{ST0+2*idx}:{ST0+2*idx+1}]")
def stamp_flush(p, n, wsrd, wave_sgpr, kidx=0, vt=2):
    if not DIAG: return
    if os.environ.get("DBGOUT"):
        L = p.newlabel("dbo")
        p.I("s_waitcnt lgkmcnt(0)")
        p.I(f"s_cmp_lg_u32 s{wave_sgpr}, 0"); p.I(f"s_cbranch_scc1 {L}")
        p.I("s_mov_b64 exec, 1")
        p.I(f"v_mov_b32 v{vt}, 0")
        p.I(f"s_not_b32 s3, s{ST0}")
        p.I(f"v_mov_b32 v{vt+1}, s3")
        p.I(f"buffer_atomic_umax v{vt+1}, v{vt}, s[84:87], 0 offen offset:4")
        lst = [(1, 2), (10, 3), (7, 4), (4, 5), (2, 6), (8, 7), (9, 8), (11, 9)] if n == 12 else [(0, 10), (3, 11), (5, 12), (6, 13), (7, 14), (8, 15)]
        for i, d in lst:
            p.I(f"v_mov_b32 v{vt+1}, s{ST0+2*i}")
            p.I(f"buffer_atomic_umax v{vt+1}, v{vt}, s[84:87], 0 offen offset:{4*d}")
        p.L(L)
        return
    p.I("s_waitcnt lgkmcnt(0)")
    p.I(f"s_lshl_b32 s3, s2, 4")
    p.I(f"s_add_u32 s3, s3, s{wave_sgpr}")
    p.I(f"s_lshl_b32 s3, s3, 7")
    p.I(f"s_add_u32 s3, s3, {WS_DIAG + kidx*0x100000}")
    p.I("s_mov_b64 exec, 1")
    p.I(f"v_mov_b32 v{vt}, 0")
    for i in range(n):
        p.I(f"v_mov_b32 v{vt+1}, s{ST0+2*i}")
        p.I(f"buffer_store_dword v{vt+1}, v{vt}, s[{wsrd}:{wsrd+3}], s3 offen offset:{4*i}")

ROT = int(os.environ.get("ROT", "1"))
def kadv(p, sreg, stride, nst):
    p.I(f"s_add_u32 s{sreg}, s{sreg}, {stride}")
    p.I(f"s_cmp_eq_u32 s{sreg}, {stride*nst}")
    p.I(f"s_cselect_b32 s{sreg}, 0, s{sreg}")
def kmod(p, sreg, nst):
    for _ in range(2):
        p.I(f"s_cmp_ge_u32 s{sreg}, {nst}")
        p.I(f"s_cselect_b32 s3, {nst}, 0")
        p.I(f"s_sub_u32 s{sreg}, s{sreg}, s3")
    kmod.n = getattr(kmod, "n", 0) + 1
    if not (ROT and (int(os.environ.get("ROTM", "7")) >> (kmod.n - 1)) & 1): p.I(f"s_mov_b32 s{sreg}, 0")
```

```python
from common import *

class Opnd:
    def __init__(self, kind, rows):
        self.kind, self.rows = kind, rows
        self.bytes = rows * 128
        self.ni = rows // 32
        self.nsub = rows // 64
        self.naddr = {"kc": 4, "tr": self.nsub, "fm": 1, "tb": 2}[kind]

    def cons_setup(self, p, A, vL, sw, t, stmp):
        k = self.kind
        if k == "kc":
            p.I(f"""
            v_and_b32 v{t}, 31, v{vL}
            v_lshrrev_b32 v{t+1}, 5, v{vL}
            v_bfe_u32 v{t+2}, v{vL}, 1, 3
            v_xor_b32 v{t+1}, v{t+1}, v{t+2}
            v_lshlrev_b32 v{t+1}, 4, v{t+1}
            v_lshl_add_u32 v{t}, v{t}, 7, v{t+1}
            s_mul_i32 s{stmp}, s{sw}, {self.nsub*4096}
            v_add_u32 v{A}, s{stmp}, v{t}
            v_xor_b32 v{A+1}, 32, v{A}
            v_xor_b32 v{A+2}, 64, v{A}
            v_xor_b32 v{A+3}, 96, v{A}
            """)
        elif k == "fm":
            p.I(f"""
            v_and_b32 v{t}, 31, v{vL}
            v_lshrrev_b32 v{t+1}, 5, v{vL}
            v_mul_u32_u24 v{t+1}, {self.rows*16}, v{t+1}
            v_lshl_add_u32 v{t}, v{t}, 4, v{t+1}
            s_mul_i32 s{stmp}, s{sw}, {self.nsub*512}
            v_add_u32 v{A}, s{stmp}, v{t}
            """)
        elif k == "tr":
            rb = self.rows * 2
            p.I(f"""
            v_bfe_u32 v{t}, v{vL}, 4, 1
            v_and_b32 v{t+1}, 1, v{vL}
            v_lshl_add_u32 v{t}, v{t}, 1, v{t+1}      ; pi
            v_bfe_u32 v{t+1}, v{vL}, 2, 2             ; r
            v_lshrrev_b32 v{t+2}, 5, v{vL}
            v_lshl_add_u32 v{t+2}, v{t+2}, 3, v{t+1}  ; 8hh+r
            v_mul_u32_u24 v{t+2}, {rb}, v{t+2}
            v_lshl_add_u32 v{t+2}, v{t}, 4, v{t+2}
            v_bfe_u32 v{t}, v{vL}, 1, 1
            v_lshl_add_u32 v{t+2}, v{t}, 3, v{t+2}
            """)
            if self.rows == 128:
                p.I(f"""
                s_lshl_b32 s{stmp}, s{sw}, 1
                v_xor_b32 v{t}, s{stmp}, v{t+1}
                v_xor_b32 v{t+3}, 1, v{t}
                v_lshl_add_u32 v{A}, v{t}, 6, v{t+2}
                v_lshl_add_u32 v{A+1}, v{t+3}, 6, v{t+2}
                """)
            else:
                p.I(f"""
                v_lshrrev_b32 v{t+1}, 1, v{t+1}
                v_xor_b32 v{t}, s{sw}, v{t+1}
                v_lshl_add_u32 v{A}, v{t}, 6, v{t+2}
                """)
        elif k == "tb":
            p.I(f"""
            v_bfe_u32 v{t}, v{vL}, 4, 1
            v_bfe_u32 v{t+1}, v{vL}, 1, 1
            v_lshl_add_u32 v{t}, v{t}, 1, v{t+1}      ; tb
            v_bfe_u32 v{t+1}, v{vL}, 2, 2             ; r
            v_lshrrev_b32 v{t+2}, 5, v{vL}
            v_lshl_add_u32 v{t+2}, v{t+2}, 3, v{t+1}  ; 8hh+r
            v_lshlrev_b32 v{t+1}, 2, v{t}
            v_xor_b32 v{t+2}, v{t+2}, v{t+1}
            v_lshlrev_b32 v{t+2}, 4, v{t+2}
            v_lshl_add_u32 v{t+2}, v{t}, 10, v{t+2}
            v_and_b32 v{t}, 1, v{vL}
            v_lshl_add_u32 v{t+2}, v{t}, 3, v{t+2}
            s_mul_i32 s{stmp}, s{sw}, {self.nsub*4096}
            v_add_u32 v{A}, s{stmp}, v{t+2}
            v_xor_b32 v{A+1}, 64, v{A}
            """)

    def frag_reads(self, dst, sub, kk, A, off):
        k = self.kind
        if k == "kc": return [f"ds_read_b128 {v(dst,4)}, v{A+kk} offset:{off+sub*4096}"]
        if k == "fm": return [f"ds_read_b128 {v(dst,4)}, v{A} offset:{off+2*kk*self.rows*16+sub*512}"]
        if k == "tr":
            rb = self.rows * 2
            return [f"ds_read_b64_tr_b16 {v(dst+2*jh,2)}, v{A+sub} offset:{off+(16*kk+4*jh)*rb}" for jh in range(2)]
        if k == "tb":
            return [f"ds_read_b64_tr_b16 {v(dst+2*jh,2)}, v{A+jh} offset:{off+kk*256+sub*4096}" for jh in range(2)]

J0 = int(os.environ.get('J0', '0'))
GRP = 49152

class Engine:
    def __init__(self, R, C, NST, NS=None, NU=None, NB=2, early=False, P0=3, burst=2, gap=False, pat=None):
        self.gap = gap; self.pat = pat
        assert not gap or (NB == 4 and early)
        self.R, self.C, self.NST, self.NB, self.early, self.P0, self.burst = R, C, NST, NB, early, P0, burst
        if NU:
            assert R.bytes == C.bytes
            self.NU = NU; self.PER = NU if NU % 2 else NU // 2
            self.pos = lambda n: (n % NU) * R.bytes
            self.lds = NU * R.bytes
        else:
            self.NU = 2 * NS; self.PER = NS
            sl = R.bytes + C.bytes
            self.pos = lambda n: ((n // 2) % NS) * sl + (n % 2) * R.bytes
            self.lds = NS * sl
        self.ngrp = max(self.pos(n) for n in range(2 * self.PER)) // GRP + 1
        self.nbar = NST + 1
        self.fr_per = 4 * (R.nsub + C.nsub)
        assert NB in (2, 4)

    def loader(self, p, issue, stamps=False, hook=None, after_last=None):
        ni = [self.R.ni, self.C.ni]
        last = -1
        extra = 0
        NUN = 2 * self.NST
        def upto(lim, burst):
            nonlocal last
            n = 0
            while last + 1 <= min(lim, NUN - 1) and n < burst:
                last += 1; issue(last // 2, last % 2, self.pos(last)); n += 1
        upto(self.NU - 1, 2 * self.P0)
        if hook: hook()
        for j in range(self.nbar):
            if j < self.NST:
                assert last >= 2 * j + 1, (last, j)
                cnt = sum(ni[n % 2] for n in range(2 * j + 2, last + 1)) + extra
                if stamps == 3 and J0 <= j < J0 + 7: stamp(p, 2 + 3 * (j - J0))
                p.I(f"s_waitcnt vmcnt({min(63, cnt)})")
                if stamps == 3 and J0 <= j < J0 + 7: stamp(p, 3 + 3 * (j - J0))
            p.I("s_barrier")
            if stamps == 3 and J0 <= j < J0 + 7: stamp(p, 4 + 3 * (j - J0))
            if stamps == 4: stamp(p, 1 + j)
            if stamps is True and j < 12:
                stamp(p, 2 + 2 * j); cstamp(p, 3 + 2 * j)
            done = j - 1 if self.early else j - 2
            upto(max(self.NU - 1, 2 * done + 1 + self.NU), 2 * self.burst)
            if after_last and last == NUN - 1 and not extra:
                after_last(); extra = 2

    def rs_setup(self, p, LW, vL, slw):
        for w, op in enumerate((self.R, self.C)):
            p.I(f"s_mul_i32 s3, s{slw}, {op.bytes//4}")
            p.I(f"v_lshl_add_u32 v{LW+2*w}, v{vL}, 4, s3")
            p.I(f"v_add_u32 v{LW+2*w+1}, {GRP}, v{LW+2*w}")

    def loader_rs(self, p, gload, LW, RB, NR, hook=None, LAG=2):
        ni = [self.R.ni, self.C.ni]
        pieces = [(n, i) for n in range(2 * self.NST) for i in range(ni[n % 2])]
        NP = len(pieces)
        endp = {}
        for q, (n, i) in enumerate(pieces): endp[n] = q + 1
        st = dict(nl=0, nw=0, wdone=0)
        def load():
            q = st["nl"]; n, i = pieces[q]
            gload(n // 2, n % 2, i, RB + 4 * (q % NR)); st["nl"] += 1
        def write():
            q = st["nw"]; n, i = pieces[q]
            assert q < st["nl"]
            p.I(f"s_waitcnt vmcnt({min(63, st['nl'] - q - 1)})")
            g, o = divmod(self.pos(n), GRP)
            assert g < 2
            p.I(f"ds_write_b128 v{LW+2*(n%2)+g}, {v(RB+4*(q%NR),4)} offset:{o+i*1024}")
            st["nw"] += 1
        def refill(force=False):
            while st["nl"] < NP and st["nl"] - NR < st["wdone"]: load()
        while st["nl"] < min(NR, NP): load()
        if hook: hook()
        for j in range(self.nbar):
            done = (j - 1) - 1 if self.early else (j - 1) - 2
            lim = min(2 * self.NST - 1, max(self.NU - 1, 2 * done + 1 + self.NU))
            if j == 0: lim = 1
            tgt = endp[lim]
            if j < self.NST: assert tgt >= endp[2 * j + 1]
            while st["nw"] < tgt:
                write()
                if st["nw"] - LAG > st["wdone"] and st["nl"] < NP:
                    p.I(f"s_waitcnt lgkmcnt({LAG})")
                    st["wdone"] = st["nw"] - LAG
                    refill()
            if st["wdone"] < st["nw"]:
                p.I("s_waitcnt lgkmcnt(0)")
                st["wdone"] = st["nw"]
            p.I("s_barrier")
            refill()

    def naddr(self): return (self.R.naddr + self.C.naddr) * self.ngrp

    def cons_setup(self, p, AD, vL, swm, swn, t, stmp):
        R, C = self.R, self.C
        n = R.naddr + C.naddr
        R.cons_setup(p, AD, vL, swm, t, stmp)
        C.cons_setup(p, AD + R.naddr, vL, swn, t, stmp)
        for g in range(1, self.ngrp):
            for i in range(n):
                p.I(f"v_add_u32 v{AD+g*n+i}, {g*GRP}, v{AD+i}")

    def _prep(self, AD, FR):
        R, C, NB = self.R, self.C, self.NB
        TU, TT = R.nsub, C.nsub
        n = R.naddr + C.naddr
        self.order = order = [(t, u) for t in range(TT) for u in range(TU)]
        def fr(step, which, sub):
            b = FR + self.fr_per * (step % NB)
            return b + 4 * sub if which == "R" else b + 4 * TU + 4 * sub
        def rd(step, which, sub):
            st, kk = divmod(step, 4)
            g, o = divmod(self.pos(2 * st + (which == "C")), GRP)
            if which == "R": return R.frag_reads(fr(step, "R", sub), sub, kk, AD + g * n, o)
            return C.frag_reads(fr(step, "C", sub), sub, kk, AD + g * n + R.naddr, o)
        lastuse = {}; firstuse = {}
        for i, (t, u) in enumerate(order):
            for key in (("C", t), ("R", u)):
                lastuse[key] = i; firstuse.setdefault(key, i)
        keys = sorted(lastuse, key=lambda k: (lastuse[k], firstuse[k]))
        self.fr, self.rd, self.lastuse, self.firstuse, self.keys = fr, rd, lastuse, firstuse, keys
        ev = []
        for kk in range(4):
            for i in range(len(order)):
                ev.append(("m", kk, i))
                if self.gap:
                    if kk == 1 and i == len(order) - 1:
                        ev.append(("b",))
                        for ds in (4, 5):
                            for k in sorted(keys, key=lambda k: firstuse[k]): ev.append(("r", ds, k))
                    if kk >= 2:
                        for k in keys:
                            if lastuse[k] == i: ev.append(("r", kk + 4, k))
                else:
                    if (kk + NB) % 4 == 0 and i == lastuse[keys[0]]: ev.append(("b",))
                    for k in keys:
                        if lastuse[k] == i: ev.append(("r", kk + NB, k))
        self.ev = ev
        seq = []
        for st in range(3):
            for e in ev: seq.append((st, e))
        self.waits = {}
        for idx, (st, e) in enumerate(seq):
            if st != 2 or e[0] != "m": continue
            _, kk, i = e
            t, u = order[i]
            needk = [k for k in (("C", t), ("R", u)) if firstuse[k] == i]
            if not needk: continue
            cnt = 0; found = 0
            for j in range(idx - 1, -1, -1):
                st2, e2 = seq[j]
                if e2[0] == "r":
                    if st2 * 4 + e2[1] == st * 4 + kk and e2[2] in needk: found = 1; break
                    cnt += len(rd(0, *e2[2]))
                if e2[0] == "b" and self.early: found = 2; break
            assert found
            if found == 1: self.waits[(kk, i)] = min(15, cnt)

    def cons_prologue(self, p, AD, FR, barrier=True):
        self._prep(AD, FR)
        if barrier: p.I("s_barrier")
        for e in self.ev:
            if e[0] == "r" and e[1] >= 4:
                for r in self.rd(e[1] - 4, *e[2]): p.I(r)
        if self.early: p.I("s_waitcnt lgkmcnt(0)")

    def cons_stages(self, p, s0, s1, ACC, r_is_A, sctr, label, loop=True):
        TU = self.R.nsub
        def emit(st0, nst):
            for st in range(st0, st0 + nst):
                for e in self.ev:
                    if e[0] == "m":
                        _, kk, i = e
                        if (kk, i) in self.waits: p.I(f"s_waitcnt lgkmcnt({self.waits[(kk, i)]})")
                        t, u = self.order[i]
                        d = ACC + 16 * (t * TU + u)
                        X, W = self.fr(4 * st + kk, "R", u), self.fr(4 * st + kk, "C", t)
                        A, B = (X, W) if r_is_A else (W, X)
                        if self.pat:
                            mi = (kk * len(self.order) + i) % len(self.pat)
                            if self.pat[mi] != self.pat[mi - 1]: p.I(f"s_setprio {self.pat[mi]}")
                        p.I(f"v_mfma_f32_32x32x16_bf16 {v(d,16)}, {v(A,4)}, {v(B,4)}, {v(d,16)}")
                    elif e[0] == "b":
                        if self.early: p.I("s_waitcnt lgkmcnt(0)")
                        p.I("s_barrier")
                    else:
                        for r in self.rd(4 * st + e[1], *e[2]): p.I(r)
        nit = (s1 - s0) // self.PER if loop else 0
        if nit < 2: nit = 0
        if nit:
            p.I(f"s_mov_b32 s{sctr}, 0")
            p.R(".p2align 3")
            p.L(label)
            emit(s0, self.PER)
            p.I(f"s_add_u32 s{sctr}, s{sctr}, 1")
            p.I(f"s_cmp_lt_u32 s{sctr}, {nit}")
            p.I(f"s_cbranch_scc1 {label}")
        emit(s0 + nit * self.PER, s1 - s0 - nit * self.PER)

    def consumer(self, p, AD, FR, ACC, r_is_A, sctr, label, loop=True):
        self.cons_prologue(p, AD, FR)
        self.cons_stages(p, 0, self.NST, ACC, r_is_A, sctr, label, loop)
        p.I("s_waitcnt lgkmcnt(0)")
```

```python
from engine import *
from k2_bu import cmul, cfma, kc_loader_voff, LOG2E, INV2PI
import k2_attn

WS_E = 0xA80000
WS_F1 = 0xB00000
WS_EP = 0xBF0000
FAST = int(os.environ.get('FAST', '1'))
HASQ = 68
QONLY = int(os.environ.get('QONLY', '0'))
BD = int(os.environ.get("BD", "0"))
PFA = int(os.environ.get("PFA", "1")); PFB = int(os.environ.get("PFB", "1"))
EQ = Engine(Opnd("kc", 128), Opnd("tr", 128), 10, NU=5, early=True, P0=3)
W = "s[8:11]"; DBG = "s[84:87]"; OUT = "s[92:95]"
TAG = 80
SPIN = 200000
GOIT = int(os.environ.get('GOIT', '7'))
YGATE = 0
YPF = 0
RS = int(os.environ.get('RS', '0'))
PATB = eval(os.environ.get('PATB', 'None')); PATY = eval(os.environ.get('PATY', 'None'))

EB = Engine(Opnd("kc", 128), Opnd("kc", 128), 10, NU=5, early=True, P0=3, pat=PATB)
EY = Engine(Opnd("tb", 128), Opnd("kc", 128), 20, NU=5, early=True, P0=3, pat=PATY)
CPF = int(os.environ.get("CPF", "4"))

def put_flag(p, soff, vt):
    p.I(f"""
    v_mov_b32 v{vt}, 0
    v_mov_b32 v{vt+1}, s{TAG}
    s_mov_b64 exec, 1
    buffer_store_dword v{vt+1}, v{vt}, {W}, s{soff} offen sc1
    s_mov_b64 exec, -1
    """)

def count_in(p, vt):
    p.I(f"""
    v_mov_b32 v{vt}, 0
    v_mov_b32 v{vt+1}, 1
    s_mov_b64 exec, 1
    buffer_atomic_add v{vt+1}, v{vt}, {DBG}, 0 offen sc1
    s_mov_b64 exec, -1
    """)

QST = 1
def pf_qkv(p, name, sw, vt, vd):
    p.I(f"""
    v_lshlrev_b32 v{vt}, 7, v2
    s_mul_i32 s40, s2, 10240
    s_mul_i32 s41, s{sw}, 5120
    s_add_u32 s40, s40, s41
    s_mul_i32 s41, s2, 9600
    s_mul_i32 s42, s{sw}, 4480
    s_add_u32 s41, s41, s42
    s_sub_u32 s41, s41, 8960
    s_mov_b32 s38, {2048*640*2}
    s_cmp_ge_u32 s{sw}, 2
    s_cselect_b32 s36, s26, s24
    s_cselect_b32 s37, s27, s25
    s_cselect_b32 s38, {640*1920*2}, s38
    s_cselect_b32 s40, s41, s40
    s_and_b32 s37, s37, 0xffff
    s_mov_b32 s39, 0x00020000
    s_mov_b32 exec_hi, 0xff
    buffer_load_dword v{vd}, v{vt}, s[36:39], s40 offen
    s_mov_b64 exec, -1
    """)
def vpf_front(p):
    p.I(f"""
    s_lshl_b32 s34, s15, 3
    s_add_u32 s34, s34, {KA['Bre'] - 16}
    s_cmp_ge_u32 s15, 2
    s_cselect_b32 s34, s34, {KA['A_x']}
    s_load_dwordx2 s[36:37], s[0:1], s34
    v_lshlrev_b32 v16, 7, v2
    s_and_b32 s35, s2, 255
    s_mul_i32 s40, s35, 10240
    s_mul_i32 s41, s15, 5120
    s_add_u32 s40, s40, s41
    s_mul_i32 s41, s35, 3200
    s_mov_b32 s38, {2048*640*2}
    s_cmp_ge_u32 s15, 2
    s_cselect_b32 s38, {640*640*2}, s38
    s_cselect_b32 s40, s41, s40
    s_cselect_b32 s42, 0x1ffffff, -1
    s_cselect_b32 s43, 0, 0xff
    s_mov_b32 s39, 0x00020000
    s_waitcnt lgkmcnt(0)
    s_and_b32 s37, s37, 0xffff
    """)
    if BD: p.I(f"s_sleep {BD}")
    p.I(f"""
    s_mov_b64 exec, s[42:43]
    buffer_load_dword v17, v16, s[36:39], s40 offen
    s_mov_b64 exec, -1
    """)
def vpf_late(p):
    p.I(f"""
    s_cmp_eq_u32 s15, 0
    s_cbranch_scc1 vl_d
    s_lshl_b32 s34, s15, 3
    s_add_u32 s34, s34, {KA['Cre'] - 8}
    s_cmp_eq_u32 s15, 3
    s_cselect_b32 s34, {KA['wo']}, s34
    s_load_dwordx2 s[36:37], s[0:1], s34
    v_lshlrev_b32 v16, 7, v2
    s_and_b32 s35, s2, 255
    s_mul_i32 s40, s35, 5120
    s_mov_b32 s38, {640*640*2}
    s_mov_b32 s39, 0x00020000
    s_waitcnt lgkmcnt(0)
    s_and_b32 s37, s37, 0xffff
    s_mov_b32 exec_hi, 0xff
    buffer_load_dword v17, v16, s[36:39], s40 offen
    s_mov_b64 exec, -1
    s_waitcnt vmcnt(0)
    """)
    p.L("vl_d")

def qkv_loader(p):
    p.I(f"""
    s_load_dwordx4 s[24:27], s[0:1], {KA['B_x']}
    s_lshl_b32 s30, s12, 7
    s_lshl_b32 s31, s15, 5
    s_add_u32 s30, s30, s31
    s_mul_i32 s30, s30, 1280
    v_lshrrev_b32 v3, 3, v2
    v_mul_u32_u24 v3, 1280, v3
    v_add_u32 v3, s30, v3
    s_waitcnt lgkmcnt(0)
    """)
    if PFA == 1: pf_qkv(p, "pfa", 15, 16, 17)
    if PFB == 2: vpf_front(p)
    if int(os.environ.get("PFW", "0")): p.I("s_waitcnt vmcnt(0)")
    kc_loader_voff(p, 4, 3, 2, 8 * 1280, 12)
    p.I(f"""
    s_lshl_b32 s31, s15, 4
    s_mul_i32 s31, s31, 3840
    s_lshl_b32 s32, s13, 8
    s_add_u32 s31, s31, s32
    v_lshrrev_b32 v12, 4, v2
    v_mul_u32_u24 v3, 3840, v12
    v_add_u32 v3, s31, v3
    v_and_b32 v13, 15, v2
    v_lshlrev_b32 v14, 2, v12
    v_xor_b32 v13, v13, v14
    v_lshl_add_u32 v8, v13, 4, v3
    v_add_u32 v9, {15360-1024}, v8
    v_add_u32 v10, {2*(15360-1024)}, v8
    v_add_u32 v11, {3*(15360-1024)}, v8
    """)
    srd(p, 36, 24, 2048*640*2)
    srd(p, 40, 26, 640*1920*2)
    p.I(f"""
    s_add_u32 s6, s4, {WS_EP}
    s_addc_u32 s7, s5, 0
    s_load_dword s{TAG}, s[6:7], 0
    """)
    p.I("s_mov_b32 s34, s17")
    kmod(p, 34, 10)
    p.I(f"s_mul_i32 s35, s34, {64*3840}"); p.I("s_lshl_b32 s34, s34, 7")
    def issue(st, which, off):
        p.I(f"s_add_u32 m0, s33, {off}")
        for i in range(4):
            p.I(f"buffer_load_dwordx4 v{4+4*which+i}, s[{36+4*which}:{39+4*which}], s{34+which} offen offset:{i*1024} lds")
        kadv(p, 34 + which, 128 if which == 0 else 64*3840, 10)
    def hook():
        p.I("s_waitcnt lgkmcnt(0)"); p.I(f"s_add_u32 s{TAG}, s{TAG}, 1")
    EQ.loader(p, issue, hook=hook)

def qkv_consumer(p):
    E = EQ
    AD = 4; FR = 28; ACC = 60; FA = 16
    assert AD + E.naddr() <= FA and FR + 2 * E.fr_per <= ACC
    E.cons_setup(p, AD, 2, 28, 29, FR, 30)
    for i in range(64): p.I(f"v_mov_b32 v{ACC+i}, 0")
    T = FR
    p.I(f"""
    v_and_b32 v126, 31, v2
    v_lshrrev_b32 v127, 5, v2
    s_cmp_ge_u32 s13, 5
    s_cselect_b32 s30, 1, 0
    s_cmp_ge_u32 s13, 10
    s_addc_u32 s30, s30, 0           ; ty
    s_mul_i32 s31, s30, 5
    s_sub_u32 s31, s13, s31
    s_lshl_b32 s31, s31, 1
    s_add_u32 s31, s31, s29
    s_lshl_b32 s32, s31, 6
    s_mul_i32 s33, s32, 3277
    s_lshr_b32 s33, s33, 16
    s_add_u32 s32, s32, 63
    s_mul_i32 s32, s32, 3277
    s_lshr_b32 s32, s32, 16
    v_add_u32 v{T}, s33, v2
    v_mul_u32_u24 v{T+1}, 20, v{T}
    v_lshrrev_b32 v{T+1}, 6, v{T+1}
    v_sub_u32 v{T+1}, s31, v{T+1}    ; w
    v_mul_u32_u24 v{T+2}, {FST}, v{T}
    v_lshl_add_u32 v{T+2}, v{T+1}, 7, v{T+2}
    s_lshl_b32 s30, s30, 8
    s_lshl_b32 s34, s12, 3
    s_add_u32 s30, s30, s34
    s_lshl_b32 s34, s28, 2
    s_add_u32 s30, s30, s34
    s_add_u32 s30, s30, {WS_F1}
    v_add_u32 v{FA}, s30, v{T+2}
    v_cmp_ge_u32 s[74:75], s32, v{T}
    s_waitcnt lgkmcnt(0)
    s_add_u32 s{TAG}, s{TAG}, 1
    v_mov_b32 v{FA+1}, s{TAG}
    s_cmp_ge_u32 s13, 10
    s_cbranch_scc1 q_consV
    s_lshl_b32 s30, s13, 4
    s_lshl_b32 s31, s29, 3
    s_add_u32 s30, s30, s31
    s_lshl_b32 s30, s30, 15
    s_lshl_b32 s31, s12, 11
    s_add_u32 s30, s30, s31
    s_lshl_b32 s31, s28, 10
    s_add_u32 s30, s30, s31
    v_lshlrev_b32 v124, 15, v127
    v_lshl_add_u32 v124, v126, 4, v124
    v_add_u32 v124, s30, v124
    """)
    E.consumer(p, AD, FR, ACC, False, 34, "q_lqk")
    stamp(p, 1)
    n = 0
    for t in range(2):
        for ap in range(2):
            p.I(f"s_mov_b32 s{32+(n%2)}, {WS_QK + (4*t+2*ap)*32768}")
            for u in range(2):
                d = ACC + 32 * t + 16 * u + 8 * ap
                o = FR + 4 * ((2 * n + u) % 8)
                for j in range(4):
                    p.I(f"v_cvt_pk_bf16_f32 v{o+j}, v{d+2*j}, v{d+2*j+1}")
                p.I(f"buffer_store_dwordx4 {v(o,4)}, v124, {W}, s{32+(n%2)} offen offset:{u*512} sc1")
            n += 1
    p.I("s_branch q_pub")
    p.L("q_consV")
    p.I(f"""
    v_and_b32 v1, 19, v126
    v_bfe_u32 v0, v126, 2, 1
    v_bfe_u32 v3, v126, 3, 1
    v_lshl_add_u32 v1, v0, 3, v1
    v_lshl_add_u32 v1, v3, 2, v1
    s_sub_u32 s30, s13, 10
    s_lshl_b32 s30, s30, 7
    s_lshl_b32 s31, s29, 6
    s_add_u32 s30, s30, s31
    v_add_u32 v1, s30, v1
    s_lshl_b32 s31, s12, 2
    s_lshl_b32 s32, s28, 1
    s_add_u32 s31, s31, s32
    s_mul_i32 s31, s31, 1280
    s_add_u32 s31, s31, {WS_V}
    s_mov_b32 s35, 81920
    """)
    for t in range(2):
        p.I(f"""
        v_add_u32 v{T}, {32*t}, v1
        v_mul_u32_u24 v{T+1}, 3277, v{T}
        v_lshrrev_b32 v{T+1}, 16, v{T+1}
        v_mul_u32_u24 v{T+2}, 20, v{T+1}
        v_sub_u32 v{T+2}, v{T}, v{T+2}
        v_and_b32 v{T+3}, 1, v{T+1}
        v_lshlrev_b32 v{T+3}, 2, v{T+3}
        v_sub_u32 v{T+2}, v{T+2}, v{T+3}
        v_add_u32 v{T+4}, 20, v{T+2}
        v_cmp_gt_i32 vcc, 0, v{T+2}
        v_cndmask_b32 v{T+2}, v{T+2}, v{T+4}, vcc
        v_and_b32 v{T+4}, 3, v{T+2}
        v_bfe_u32 v{T+5}, v{T+2}, 2, 1
        v_bfe_u32 v{T+6}, v{T+2}, 3, 1
        v_lshl_add_u32 v{T+4}, v{T+5}, 3, v{T+4}
        v_lshl_add_u32 v{T+4}, v{T+6}, 2, v{T+4}
        v_cmp_gt_u32 vcc, 16, v{T+2}
        v_cndmask_b32 v{T+2}, v{T+2}, v{T+4}, vcc
        v_mul_lo_u32 v{T+1}, v{T+1}, s35
        v_lshl_add_u32 v{T+1}, v{T+2}, 4, v{T+1}
        v_mul_u32_u24 v{T+3}, 320, v127
        v_add3_u32 v{124+t}, v{T+1}, v{T+3}, s31
        """)
    E.consumer(p, AD, FR, ACC, True, 34, "q_lv")
    stamp(p, 1)
    n = 0
    for t in range(2):
        for u in range(2):
            for aa in range(2):
                d = ACC + 32 * t + 16 * u + 8 * aa
                o = FR + 4 * (n % 8)
                for j in range(4):
                    p.I(f"v_cvt_pk_bf16_f32 v{o+j}, v{d+2*j}, v{d+2*j+1}")
                p.I(f"buffer_store_dwordx4 {v(o,4)}, v{124+t}, {W}, 0 offen offset:{u*1280+aa*640} sc1")
                n += 1
    p.L("q_pub")
    if FAST: p.I("s_mov_b32 s81, 1")
    else: q_publish(p)

def q_publish(p):
    p.I(f"""
    s_waitcnt vmcnt(0)
    s_mov_b64 exec, s[74:75]
    buffer_store_dword v17, v16, {W}, 0 offen sc1
    s_mov_b64 exec, -1
    """)
    stamp(p, 10)

def tile20(p, sj):
    p.I(f"""
    s_and_b32 s12, s70, 3
    s_lshl_b32 s12, s12, 2
    s_and_b32 s13, s{sj}, 3
    s_add_u32 s12, s12, s13
    s_lshr_b32 s13, s70, 2
    s_mul_i32 s13, s13, 5
    s_lshr_b32 s31, s{sj}, 2
    s_add_u32 s13, s13, s31
    """)

def bu_loader(p, hook):
    p.I(f"""
    s_load_dwordx2 s[16:17], s[0:1], {KA['A_x']}
    s_load_dwordx4 s[20:23], s[0:1], {KA['Bre']}
    s_sub_u32 s30, s71, 12
    """)
    tile20(p, 30)
    p.I(f"""
    s_lshr_b32 s30, s15, 1
    s_and_b32 s31, s15, 1
    s_lshl_b32 s34, s12, 7
    s_lshl_b32 s35, s30, 6
    s_add_u32 s34, s34, s35
    s_lshl_b32 s35, s31, 4
    s_add_u32 s34, s34, s35
    s_mul_i32 s34, s34, 1280
    v_lshrrev_b32 v3, 5, v2
    v_bfe_u32 v12, v2, 3, 2
    v_lshl_add_u32 v3, v3, 5, v12
    v_mul_u32_u24 v3, 1280, v3
    v_add_u32 v3, s34, v3
    """)
    kc_loader_voff(p, 4, 3, 2, 4 * 1280, 12)
    p.I(f"""
    s_lshl_b32 s34, s13, 6
    s_lshl_b32 s35, s30, 5
    s_add_u32 s34, s34, s35
    s_mul_i32 s34, s34, 1280
    v_lshrrev_b32 v3, 3, v2
    v_mul_u32_u24 v3, 1280, v3
    v_add_u32 v3, s34, v3
    """)
    kc_loader_voff(p, 8, 3, 2, 8 * 1280, 12)
    p.I(f"""
    s_waitcnt lgkmcnt(0)
    s_cmp_eq_u32 s31, 0
    s_cselect_b32 s18, s20, s22
    s_cselect_b32 s19, s21, s23
    """)
    srd(p, 36, 16, 2048*640*2)
    srd(p, 40, 18, 640*640*2)
    p.I(f"""
    s_sub_u32 s30, s71, 12
    s_and_b32 s34, s30, 3
    s_mul_i32 s34, s34, 5
    s_add_u32 s34, s34, 1
    s_lshr_b32 s34, s34, 1
    s_lshr_b32 s35, s30, 2
    s_lshl_b32 s35, s35, 1
    s_add_u32 s34, s34, s35
    """)
    kmod(p, 34, 10)
    p.I("s_lshl_b32 s34, s34, 7"); p.I("s_mov_b32 s35, s34")
    def issue(st, which, off):
        p.I(f"s_add_u32 m0, s33, {off}")
        for i in range(4):
            p.I(f"buffer_load_dwordx4 v{4+4*which+i}, s[{36+4*which}:{39+4*which}], s{34+which} offen offset:{i*1024} lds")
        kadv(p, 34 + which, 128, 10)
    def gload(st, which, i, vd):
        if i == 0: p.I(f"s_movk_i32 s32, {st*128}")
        p.I(f"buffer_load_dwordx4 {v(vd,4)}, v{4+4*which+i}, s[{36+4*which}:{39+4*which}], s32 offen offset:{i*1024}")
    if RS:
        EB.rs_setup(p, 12, 2, 15)
        EB.loader_rs(p, gload, 12, 16, 28)
    else: EB.loader(p, issue, hook=hook)

def bu_consumer(p):
    E = EB; name = "b"
    AD = 4; FR = 20; ACC = 52; CO = 116
    assert AD + E.naddr() <= FR and FR + 2 * E.fr_per <= ACC
    LA, LB, CR, CI, L32R, L32I, L64R, L64I, VP, VH = range(CO, CO + 10)
    T = FR
    p.I(f"""
    s_load_dwordx4 s[24:27], s[0:1], {KA['Lre']}
    s_load_dwordx2 s[16:17], s[0:1], {KA['logdt']}
    s_sub_u32 s30, s71, 12
    """)
    tile20(p, 30)
    p.I(f"""
    s_lshl_b32 s34, s13, 6
    s_lshl_b32 s35, s29, 5
    s_add_u32 s34, s34, s35
    v_and_b32 v{VP}, 31, v2
    v_add_u32 v{VP}, s34, v{VP}
    v_lshrrev_b32 v{VH}, 5, v2
    v_lshlrev_b32 v{T+8}, 1, v{VP}
    s_waitcnt lgkmcnt(0)
    global_load_ushort v{CO}, v{T+8}, s[24:25]
    global_load_ushort v{CO+1}, v{T+8}, s[26:27]
    global_load_ushort v{CO+2}, v{T+8}, s[16:17]
    """)
    E.cons_setup(p, AD, 2, 28, 29, T, 32)
    for i in range(64): p.I(f"v_mov_b32 v{ACC+i}, 0")
    lre, lim, dt = T + 9, T + 10, T + 11
    p.I(f"""
    s_mov_b32 s32, {LOG2E:#x}
    s_mov_b32 s33, {INV2PI:#x}
    s_waitcnt vmcnt(0)
    v_lshlrev_b32 v{lre}, 16, v{CO}
    v_lshlrev_b32 v{lim}, 16, v{CO+1}
    v_lshlrev_b32 v{dt}, 16, v{CO+2}
    v_mul_f32 v{dt}, s32, v{dt}
    v_exp_f32 v{dt}, v{dt}
    v_cvt_pk_bf16_f32 v{dt}, v{dt}, v{dt}
    v_lshlrev_b32 v{dt}, 16, v{dt}
    v_mul_f32 v{T}, v{dt}, v{lre}
    v_mul_f32 v{T+1}, v{dt}, v{lim}
    v_mul_f32 v{T}, s32, v{T}
    v_mul_f32 v{T+1}, s33, v{T+1}
    v_exp_f32 v{T}, v{T}
    v_fract_f32 v{T+1}, v{T+1}
    v_cos_f32 v{T+2}, v{T+1}
    v_sin_f32 v{T+3}, v{T+1}
    v_mul_f32 v{LA}, v{T}, v{T+2}
    v_mul_f32 v{LB}, v{T}, v{T+3}
    v_add_f32 v{T+4}, -1.0, v{LA}
    v_mul_f32 v{T+5}, v{lre}, v{lre}
    v_fma_f32 v{T+5}, v{lim}, v{lim}, v{T+5}
    v_rcp_f32 v{T+5}, v{T+5}
    v_mul_f32 v{CR}, v{T+4}, v{lre}
    v_add_f32 v{T+5}, v{T+5}, v{T+5}
    v_fma_f32 v{CR}, v{LB}, v{lim}, v{CR}
    v_mul_f32 v{CI}, v{LB}, v{lre}
    v_fma_f32 v{CI}, -v{T+4}, v{lim}, v{CI}
    v_mul_f32 v{CR}, v{CR}, v{T+5}
    v_mul_f32 v{CI}, v{CI}, v{T+5}
    """)
    cmul(p, L32R, L32I, LA, LB, LA, LB, T)
    for _ in range(4): cmul(p, L32R, L32I, L32R, L32I, L32R, L32I, T)
    cmul(p, L64R, L64I, L32R, L32I, L32R, L32I, T)
    p.I(f"s_setprio {PATB[-1] if PATB else 0}")
    E.consumer(p, AD, FR, ACC, True, 32, f"{name}_loop")
    p.I("s_setprio 3")
    stamp(p, 3)
    p.I("s_nop 7")
    RE = lambda s: ACC + s
    IM = lambda s: ACC + 32 + s
    ELR, ELI = 6, 7
    er, ei, nr, ni = RE(0), IM(0), 8, 9
    for s_ in range(1, 32):
        p.I(f"""
        v_fma_f32 v{nr}, v{LA}, v{er}, v{RE(s_)}
        v_fma_f32 v{ni}, v{LA}, v{ei}, v{IM(s_)}
        v_fma_f32 v{nr}, -v{LB}, v{ei}, v{nr}
        v_fma_f32 v{ni}, v{LB}, v{er}, v{ni}
        """)
        er, ei, nr, ni = (nr, ni, 4, 5) if s_ == 1 else (nr, ni, er, ei)
    p.I(f"""
    v_mov_b32 v{ELR}, v{er}
    v_mov_b32 v{ELI}, v{ei}
    v_mov_b32 v10, v{er}
    v_mov_b32 v11, v{ei}
    v_permlane32_swap_b32 v{ELR}, v10
    v_permlane32_swap_b32 v{ELI}, v11
    """)
    cfma(p, 12, 14, L32R, L32I, ELR, ELI, 10, 11, 16)
    p.I(f"""
    v_mov_b32 v13, s{TAG}
    v_mov_b32 v15, s{TAG}
    s_lshl_b32 s34, s12, 1
    s_add_u32 s34, s34, s28          ; cidx
    s_mul_i32 s35, s34, 10240
    s_add_u32 s36, s35, {WS_E}
    s_add_u32 s35, s35, {WS_E - 32*10240}
    v_lshlrev_b32 v16, 4, v{VP}
    s_mov_b32 exec_hi, 0
    buffer_store_dwordx4 v[12:15], v16, {W}, s36 offen sc1
    s_mov_b64 exec, -1
    v_mul_u32_u24 v17, {16*10240}, v{VH}
    v_add_u32 v17, v17, v16
    """)
    G = FR
    def preset():
        for k in range(8):
            p.I(f"v_mov_b32 v{G+4*k}, 0"); p.I(f"v_mov_b32 v{G+4*k+1}, s{TAG}")
            p.I(f"v_mov_b32 v{G+4*k+2}, 0"); p.I(f"v_mov_b32 v{G+4*k+3}, s{TAG}")
    def gather(b):
        for k in range(8):
            kk = 8 * b + k
            L = p.newlabel("g")
            p.I(f"""
            s_cmp_lt_u32 s34, {16-kk}
            s_cbranch_scc1 {L}
            s_cmp_ge_u32 s34, {32-kk}
            s_cselect_b32 exec_lo, -1, 0
            s_add_u32 s36, s35, {kk*10240}
            buffer_load_dwordx4 {v(G+4*k,4)}, v17, {W}, s36 offen sc1
            """)
            p.L(L)
        p.I("s_mov_b64 exec, -1")
    def check(b):
        lbl = f"{name}_poll{b}"
        p.I("s_mov_b32 s37, 0")
        p.L(lbl)
        p.I("s_waitcnt vmcnt(0)")
        for k in range(8):
            p.I(f"v_xor_b32 v12, s{TAG}, v{G+4*k+1}")
            p.I(f"v_xor_b32 v13, s{TAG}, v{G+4*k+3}")
            p.I(f"v_or_b32 v14, v12, v13" if k == 0 else f"v_or3_b32 v14, v14, v12, v13")
        p.I(f"""
        v_cmp_ne_u32 vcc, 0, v14
        s_cmp_eq_u64 vcc, 0
        s_cbranch_scc1 {lbl}_ok
        s_add_u32 s37, s37, 1
        s_cmp_gt_u32 s37, {SPIN}
        s_cbranch_scc1 {lbl}_ok
        s_sleep 6
        """)
        gather(b)
        p.I(f"s_branch {lbl}")
        p.L(lbl + "_ok")
    preset()
    for s_ in range(32):
        p.I(f"""
        v_mul_f32 v{18+(s_&1)}, v{CI}, v{RE(s_)}
        v_mul_f32 v{RE(s_)}, v{CR}, v{RE(s_)}
        v_fma_f32 v{RE(s_)}, -v{CI}, v{IM(s_)}, v{RE(s_)}
        v_fma_f32 v{IM(s_)}, v{CR}, v{IM(s_)}, v{18+(s_&1)}
        """)
        if s_ == 8: gather(0)
    cmul(p, 8, 9, L64R, L64I, L64R, L64I, 14)
    for _ in range(3): cmul(p, 8, 9, 8, 9, 8, 9, 14)
    hr, hi, nr, ni = None, None, 10, 11
    for b in range(2):
        check(b)
        for k in range(8):
            if hr is None:
                p.I(f"v_mov_b32 v4, v{G}"); p.I(f"v_mov_b32 v5, v{G+2}"); hr, hi = 4, 5; continue
            p.I(f"""
            v_fma_f32 v{nr}, v{L64R}, v{hr}, v{G+4*k}
            v_fma_f32 v{ni}, v{L64R}, v{hi}, v{G+4*k+2}
            v_fma_f32 v{nr}, -v{L64I}, v{hi}, v{nr}
            v_fma_f32 v{ni}, v{L64I}, v{hr}, v{ni}
            """)
            hr, hi, nr, ni = nr, ni, hr, hi
        if b == 0: gather(1)
    stamp(p, 4)
    p.I(f"""
    v_mov_b32 v16, v{hr}
    v_mov_b32 v17, v{hi}
    v_mov_b32 v18, v{hr}
    v_mov_b32 v19, v{hi}
    v_permlane32_swap_b32 v16, v18
    v_permlane32_swap_b32 v17, v19
    """)
    cfma(p, 10, 11, 8, 9, 16, 17, 18, 19, 14)
    cfma(p, 12, 13, L32R, L32I, 10, 11, ELR, ELI, 14)
    p.I(f"""
    v_cmp_eq_u32 vcc, 0, v{VH}
    v_cndmask_b32 v10, v12, v10, vcc
    v_cndmask_b32 v11, v13, v11, vcc
    """)
    cmul(p, 10, 11, 10, 11, CR, CI, 14)
    p.I(f"""
    s_lshl_b32 s35, s34, 3
    s_mul_i32 s35, s35, {HS}
    s_add_u32 s35, s35, {WS_H}
    v_mul_u32_u24 v16, {4*HS}, v{VH}
    v_lshl_add_u32 v16, v{VP}, 4, v16
    """)
    pr, pi = 10, 11
    for q in range(4):
        for s_ in range(8 * q, 8 * q + 8):
            p.I(f"""
            v_fma_f32 v{RE(s_)}, v{LA}, v{pr}, v{RE(s_)}
            v_fma_f32 v{IM(s_)}, v{LA}, v{pi}, v{IM(s_)}
            v_fma_f32 v{RE(s_)}, -v{LB}, v{pi}, v{RE(s_)}
            v_fma_f32 v{IM(s_)}, v{LB}, v{pr}, v{IM(s_)}
            """)
            pr, pi = RE(s_), IM(s_)
        o = FR + 8 * q
        for j in range(4):
            p.I(f"v_cvt_pk_bf16_f32 v{o+j}, v{RE(8*q+2*j)}, v{RE(8*q+2*j+1)}")
            p.I(f"v_cvt_pk_bf16_f32 v{o+4+j}, -v{IM(8*q+2*j)}, -v{IM(8*q+2*j+1)}")
        p.I(f"buffer_store_dwordx4 {v(o,4)}, v16, {W}, s35 offen sc1")
        p.I(f"s_add_u32 s35, s35, 10240")
        p.I(f"buffer_store_dwordx4 {v(o+4,4)}, v16, {W}, s35 offen sc1")
        p.I(f"s_add_u32 s35, s35, {HS-10240}")
    p.I(f"""
    s_mul_i32 s30, s12, {FST}
    s_lshl_b32 s31, s13, 4
    s_add_u32 s30, s30, s31
    s_lshl_b32 s31, s14, 2
    s_add_u32 s30, s30, s31
    s_add_u32 s30, s30, {WS_F2}
    s_waitcnt vmcnt(0)
    """)
    put_flag(p, 30, 4)
    stamp(p, 5)

def poll_flags(p, soff, nlanes, vt, st, wide=False, sleep=4, addr=None):
    L = p.newlabel("pf")
    if addr is None: p.I(f"v_lshlrev_b32 v{vt}, {4 if wide else 2}, v2")
    va = vt if addr is None else addr
    p.I(f"s_mov_b32 s{st}, 0")
    if nlanes:
        p.I(f"s_mov_b64 s[40:41], {(1 << nlanes) - 1 if nlanes < 31 else -1}")
        if 32 <= nlanes < 64: p.I(f"s_mov_b32 s41, {(1 << (nlanes - 32)) - 1:#x}")
    p.L(L)
    if wide:
        p.I(f"""
        buffer_load_dwordx4 {v(vt+2,4)}, v{va}, {W}, s{soff} offen sc1
        s_add_u32 s{st}, s{st}, 1
        s_waitcnt vmcnt(0)
        v_xor_b32 v{vt+2}, s{TAG}, v{vt+2}
        v_xor_b32 v{vt+3}, s{TAG}, v{vt+3}
        v_xor_b32 v{vt+4}, s{TAG}, v{vt+4}
        v_xor_b32 v{vt+5}, s{TAG}, v{vt+5}
        v_or3_b32 v{vt+2}, v{vt+2}, v{vt+3}, v{vt+4}
        v_or_b32 v{vt+2}, v{vt+2}, v{vt+5}
        v_cmp_ne_u32 vcc, 0, v{vt+2}
        """)
    else:
        p.I(f"""
        buffer_load_dword v{vt+2}, v{vt}, {W}, s{soff} offen sc1
        s_add_u32 s{st}, s{st}, 1
        s_waitcnt vmcnt(0)
        v_cmp_ne_u32 vcc, s{TAG}, v{vt+2}
        """)
    p.I(f"""
    s_and_b64 vcc, vcc, s[40:41]
    s_cbranch_scc0 {L}_d
    s_sleep {sleep}
    s_cmp_lt_u32 s{st}, {SPIN}
    s_cbranch_scc1 {L}
    """)
    p.L(L + "_d")

def ytile(p):
    p.I(f"""
    s_lshl_b32 s12, s70, 1
    s_and_b32 s13, s71, 1
    s_add_u32 s12, s12, s13
    s_lshr_b32 s13, s71, 1
    """)

def y_loader(p):
    p.I(f"s_load_dwordx4 s[20:23], s[0:1], {KA['Cre']}")
    ytile(p)
    p.I(f"""
    s_lshl_b32 s34, s12, 4
    s_lshl_b32 s35, s15, 2
    s_add_u32 s34, s34, s35
    s_mul_i32 s34, s34, {HS}
    s_add_u32 s34, s34, {WS_H}
    """)
    for i in range(4):
        p.I(f"v_xor_b32 v3, {i<<2}, v2")
        p.I(f"v_lshl_add_u32 v{4+i}, v3, 4, s34")
        if i: p.I(f"v_add_u32 v{4+i}, {i*(HS-1024)}, v{4+i}")
    p.I(f"""
    s_lshl_b32 s34, s13, 7
    s_lshl_b32 s35, s15, 5
    s_add_u32 s34, s34, s35
    s_mul_i32 s34, s34, 1280
    v_lshrrev_b32 v3, 5, v2
    v_bfe_u32 v12, v2, 3, 2
    v_lshl_add_u32 v3, v3, 4, v12
    v_mul_u32_u24 v3, 1280, v3
    v_add_u32 v3, s34, v3
    """)
    kc_loader_voff(p, 8, 3, 2, 4 * 1280, 12)
    p.I("s_waitcnt lgkmcnt(0)")
    srd(p, 36, 20, 640*640*2)
    srd(p, 24, 22, 640*640*2)
    p.I("s_mov_b32 s42, s38"); p.I("s_mov_b32 s43, 0x00020000")
    if CPF:
        p.I(f"""
        s_cmp_eq_u32 s15, 0
        s_cbranch_scc1 y_poll
        s_and_b32 s35, s71, 1
        s_cmp_eq_u32 s35, 0
        s_cselect_b32 s40, s36, s24
        s_cselect_b32 s41, s37, s25
        v_lshlrev_b32 v16, 7, v2
        s_mul_i32 s34, s13, {128*1280}
        s_sub_u32 s35, s15, 1
        s_mul_i32 s35, s35, {13*4096}
        s_add_u32 s34, s34, s35
        """)
        for i in range(7):
            p.I(f"buffer_load_dword v17, v16, s[40:43], s34 offen")
            p.I(f"s_add_u32 s34, s34, 8192")
            p.I("s_waitcnt vmcnt(0)")
            if i < 6: p.I(f"s_sleep {CPF}")
        p.L("y_poll")
    p.I("s_cmp_lg_u32 s15, 0"); p.I("s_cbranch_scc1 y_nopoll")
    p.I(f"s_mul_i32 s34, s12, {FST}"); p.I(f"s_add_u32 s34, s34, {WS_F2}")
    poll_flags(p, 34, 10, 16, 30, wide=True, sleep=6)
    p.L("y_nopoll")
    p.I("s_barrier")
    p.I(f"""
    s_and_b32 s18, s71, 1
    s_mul_i32 s18, s18, 10
    s_lshl_b32 s19, s13, 2
    s_add_u32 s18, s18, s19
    """)
    kmod(p, 18, 20)
    p.I("s_lshl_b32 s19, s18, 7"); p.I("s_lshl_b32 s18, s18, 10")
    def issue(st, which, off):
        p.I(f"s_add_u32 m0, s33, {off}")
        if which == 0:
            for i in range(4):
                p.I(f"buffer_load_dwordx4 v{4+i}, {W}, s18 offen offset:{i*1024} lds")
            kadv(p, 18, 1024, 20)
        else:
            p.I(f"""
            s_cmp_ge_u32 s19, 1280
            s_cselect_b32 s40, s24, s36
            s_cselect_b32 s41, s25, s37
            s_cselect_b32 s32, 1280, 0
            s_sub_u32 s32, s19, s32
            """)
            for i in range(4):
                p.I(f"buffer_load_dwordx4 v{8+i}, s[40:43], s32 offen offset:{i*1024} lds")
            kadv(p, 19, 128, 20)
    EY.loader(p, issue)

def y_consumer(p):
    E = EY
    AD = 4; FR = 20; ACC = 52; XA = 116
    assert AD + E.naddr() <= FR and FR + E.NB * E.fr_per <= ACC
    T = FR
    p.I(f"""
    s_load_dwordx2 s[24:25], s[0:1], {KA['A_x']}
    s_load_dwordx2 s[26:27], s[0:1], {KA['Dskip']}
    """)
    ytile(p)
    p.I(f"""
    s_lshl_b32 s34, s12, 7
    s_lshl_b32 s35, s28, 6
    s_add_u32 s34, s34, s35
    s_lshl_b32 s35, s13, 7
    s_lshl_b32 s32, s29, 6
    s_add_u32 s35, s35, s32
    v_lshrrev_b32 v{XA}, 4, v2
    v_and_b32 v{XA+1}, 15, v2
    v_add_u32 v{XA+2}, s34, v{XA}
    v_lshlrev_b32 v{XA+3}, 3, v{XA+1}
    s_lshl_b32 s32, s35, 1
    v_add_u32 v{XA+3}, s32, v{XA+3}
    v_mul_u32_u24 v{XA+4}, 1280, v{XA+2}
    v_add_u32 v{XA+4}, v{XA+4}, v{XA+3}
    v_mul_u32_u24 v{XA+5}, 5120, v{XA+2}
    v_lshl_add_u32 v{XA+5}, v{XA+1}, 4, v{XA+5}
    s_waitcnt lgkmcnt(0)
    global_load_dwordx2 {v(XA+6,2)}, v{XA+3}, s[26:27]
    """)
    srd(p, 36, 24, 2048*640*2)
    E.cons_setup(p, AD, 2, 28, 29, T, 32)
    for i in range(64): p.I(f"v_mov_b32 v{ACC+i}, 0")
    p.I(f"""
    s_waitcnt vmcnt(0)
    v_lshlrev_b32 v{XA+8}, 16, v{XA+6}
    v_and_b32 v{XA+9}, 0xffff0000, v{XA+6}
    v_lshlrev_b32 v{XA+10}, 16, v{XA+7}
    v_and_b32 v{XA+11}, 0xffff0000, v{XA+7}
    """)
    p.I(f"s_setprio {PATY[-1] if PATY else 0}")
    p.I("s_barrier")
    stamp(p, 6)
    if DIAG: p.I("s_waitcnt lgkmcnt(0)")
    E.consumer(p, AD, FR, ACC, False, 32, "y_loop")
    p.I("s_setprio 3")
    stamp(p, 7)
    if os.environ.get("DLY_Y"): p.I(f"s_sleep {os.environ['DLY_Y']}")
    RS = 272
    XR = FR
    p.I("s_mov_b32 s33, 0")
    for i in range(16):
        p.I(f"buffer_load_dwordx2 {v(XR+2*i,2)}, v{XA+4}, s[36:39], s33 offen")
        if i < 15: p.I(f"s_add_u32 s33, s33, {4*1280}")
    p.I(f"""
    s_mul_i32 s32, s14, {64*RS}
    v_and_b32 v4, 31, v2
    v_lshrrev_b32 v5, 5, v2
    v_mul_u32_u24 v4, {RS}, v4
    v_lshl_add_u32 v4, v5, 6, v4
    v_add_u32 v4, s32, v4
    v_mul_u32_u24 v7, {RS}, v{XA}
    v_lshl_add_u32 v7, v{XA+1}, 4, v7
    v_add_u32 v7, s32, v7
    s_lshl_b32 s33, s35, 2
    """)
    for t in range(2):
        for u in range(2):
            for q in range(4):
                p.I(f"ds_write_b128 v4, {v(ACC+32*t+16*u+4*q,4)} offset:{u*32*RS+t*128+16*q}")
    p.I("s_waitcnt lgkmcnt(0)")
    for i in range(16):
        p.I(f"ds_read_b128 {v(ACC+4*i,4)}, v7 offset:{i*4*RS}")
    for i in range(16):
        p.I(f"s_waitcnt vmcnt(15) lgkmcnt({15-i})")
        for j in range(2):
            p.I(f"v_lshlrev_b32 v5, 16, v{XR+2*i+j}")
            p.I(f"v_and_b32 v6, 0xffff0000, v{XR+2*i+j}")
            p.I(f"v_fmac_f32 v{ACC+4*i+2*j}, v5, v{XA+8+2*j}")
            p.I(f"v_fmac_f32 v{ACC+4*i+2*j+1}, v6, v{XA+9+2*j}")
        p.I(f"buffer_store_dwordx4 {v(ACC+4*i,4)}, v{XA+5}, {OUT}, s33 offen {os.environ.get('YST', 'sc1 nt')}")
        if i < 15: p.I(f"s_add_u32 s33, s33, {4*5120}")
    if DIAG: p.I("s_waitcnt vmcnt(0)")
    stamp(p, 8)

WOV = 98
def wo_setup(p):
    p.I(f"""
    s_load_dwordx2 s[82:83], s[0:1], {KA['wo']}
    v_lshrrev_b32 v{WOV}, 3, v2
    v_mul_u32_u24 v{WOV}, 1280, v{WOV}
    v_and_b32 v{WOV+1}, 7, v2
    v_bfe_u32 v3, v2, 4, 1
    v_lshlrev_b32 v3, 2, v3
    v_xor_b32 v{WOV+1}, v{WOV+1}, v3
    v_lshl_add_u32 v{WOV}, v{WOV+1}, 4, v{WOV}
    s_sub_u32 s73, s71, 12
    s_lshr_b32 s73, s73, 1
    s_lshl_b32 s73, s73, 7
    s_waitcnt lgkmcnt(0)
    """)
    srd(p, 76, 82, 640*640*2)
def wo_part(p, slot):
    p.I(f"s_mul_i32 s33, s14, {24*1280}")
    p.I(f"s_add_u32 s33, s33, s73")
    for i in range(3):
        p.I(f"s_add_u32 m0, s24, {slot*24576+i*1024}")
        p.I(f"s_add_u32 s81, s33, {(192*slot+8*i)*1280}")
        p.I(f"buffer_load_dwordx4 v{WOV}, s[76:79], s81 offen lds")
def att_late(p):
    p.I(f"""
    s_cmp_lt_u32 s71, 12
    s_cbranch_scc1 a_nodma2
    s_cmp_eq_u32 s26, 7
    s_cbranch_scc1 a_l2
    """)
    wo_part(p, 2)
    p.I(f"""
    s_lshl_b32 s33, s14, 10
    s_add_u32 m0, s33, {3*24576}
    s_mul_i32 s33, s14, {8*1280}
    s_add_u32 s33, s33, s73
    s_add_u32 s33, s33, {576*1280}
    buffer_load_dwordx4 v{WOV}, s[76:79], s33 offen lds
    s_branch a_nodma2
    """)
    p.L("a_l2")
    wo_part(p, 0)

F3R = 8192 + 256
def outproj_tail(p):
    CW = Opnd("tr", 64)
    OF = 4; ACC = 84; WF = 116; AW = 124; AO = 126; PV_ = 127; T = 8
    def own_flag():
        p.I(f"""
        s_mov_b64 exec, 0x3ff
        buffer_store_dword v1, v0, {W}, s30 offen sc1
        s_mov_b64 exec, -1
        """)
    p.I(f"""
    s_mov_b64 exec, -1
    s_lshl_b32 s33, s13, 3
    s_lshl_b32 s34, s15, 1
    s_add_u32 s33, s33, s34
    s_add_u32 s33, s33, s16
    s_lshl_b32 s33, s33, 7
    s_lshl_b32 s34, s12, 2
    s_add_u32 s33, s33, s34
    s_add_u32 s30, s33, {WS_F3}
    v_mul_u32_u24 v0, {F3R}, v2
    v_mov_b32 v1, s{TAG}
    s_cmp_ge_u32 s71, 12
    s_cbranch_scc1 o_go
    s_waitcnt vmcnt(0)
    """)
    own_flag()
    stamp(p, 8)
    stamp_flush(p, 12, 8, 14, kidx=0)
    p.I("s_endpgm")
    p.L("o_go")
    p.I(f"""
    s_sub_u32 s31, s71, 12
    s_and_b32 s17, s31, 1
    s_lshr_b32 s18, s31, 1
    s_lshl_b32 s33, s70, 1
    s_add_u32 s17, s17, s33
    s_barrier
    """)
    wo_part(p, 1)
    p.I("s_mov_b32 s33, 0")
    CW.cons_setup(p, AW, 2, 33, T, 34)
    p.I(f"""
    v_xor_b32 v{AW+1}, 64, v{AW}
    s_mul_i32 s33, s16, 40960
    v_add_u32 v{AW}, s33, v{AW}
    v_add_u32 v{AW+1}, s33, v{AW+1}
    v_and_b32 v{T}, 31, v2
    v_lshrrev_b32 v{T+1}, 5, v2
    v_lshlrev_b32 v{AO}, 15, v{T+1}
    v_lshl_add_u32 v{AO}, v{T}, 4, v{AO}
    s_lshl_b32 s33, s17, 11
    s_lshl_b32 s34, s15, 9
    s_add_u32 s33, s33, s34
    s_mul_i32 s34, s16, {40*32768}
    s_add_u32 s33, s33, s34
    s_add_u32 s22, s33, {WS_O}
    s_lshl_b32 s33, s17, 2
    s_add_u32 s33, s33, s15
    s_lshl_b32 s33, s33, 7
    s_mul_i32 s34, s18, {F3R}
    s_add_u32 s33, s33, s34
    s_lshl_b32 s34, s16, 6
    s_add_u32 s33, s33, s34
    s_add_u32 s25, s33, {WS_F3}
    v_and_b32 v3, 15, v2
    v_lshlrev_b32 v3, 2, v3
    s_mov_b32 s26, 0x1111
    s_mov_b32 s27, 0
    s_mov_b32 s37, 0
    s_mov_b32 s36, 1
    """)
    for i in range(32): p.I(f"v_mov_b32 v{ACC+i}, 0")
    p.I("s_waitcnt vmcnt(3)")
    own_flag()
    stamp(p, 8)
    if DIAG: p.I("s_waitcnt lgkmcnt(0)")
    def wread(step, t):
        for jh in range(2):
            p.I(f"ds_read_b64_tr_b16 {v(WF+4*t+2*jh,2)}, v{AW+t} offset:{(16*step+4*jh)*128}")
    p.L("o_loop")
    p.I("s_cmp_eq_u32 s26, 0"); p.I("s_cbranch_scc1 o_np")
    p.I(f"buffer_load_dword v{PV_}, v3, {W}, s25 offen sc1")
    p.I("s_branch o_np2")
    p.L("o_np")
    p.I(f"buffer_load_dword v{PV_}, v3, s[76:79], 0 offen")
    p.L("o_np2")
    for g in range(4):
        L = f"o_c{g}"
        p.I(f"s_bitcmp1_b32 s27, {4*g}"); p.I(f"s_cbranch_scc0 {L}")
        wread(5 * g, 0); wread(5 * g, 1)
        if g < 3:
            p.I(f"s_lshr_b32 s33, s27, {4*g+4}"); p.I("s_bcnt1_i32_b32 s33, s33")
            for n in range(3 - g, 0, -1):
                p.I(f"s_waitcnt vmcnt({5*n+1})")
                p.I(f"s_cmp_eq_u32 s33, {n}"); p.I(f"s_cbranch_scc1 {L}w")
        p.I("s_waitcnt vmcnt(1)")
        p.L(L + "w")
        for i in range(5):
            for t in range(2):
                p.I(f"s_waitcnt lgkmcnt({2 if (i < 4 or t == 0) else 0})")
                d = ACC + 16 * t
                p.I(f"v_mfma_f32_32x32x16_bf16 {v(d,16)}, {v(WF+4*t,4)}, {v(OF+20*g+4*i,4)}, {v(d,16)}")
                if i < 4: wread(5 * g + i + 1, t)
        p.L(L)
    p.I(f"""
    s_cmp_eq_u32 s26, 0
    s_cbranch_scc1 o_done
    s_waitcnt vmcnt(0)
    v_cmp_ne_u32 vcc, s{TAG}, v{PV_}
    s_add_u32 s37, s37, 1
    s_lshr_b32 s33, vcc_lo, 1
    s_or_b32 s33, s33, vcc_lo
    s_lshr_b32 s34, s33, 2
    s_or_b32 s33, s33, s34
    s_cmp_gt_u32 s37, {SPIN}
    s_cselect_b32 s33, 0, s33
    s_andn2_b32 s27, s26, s33
    s_andn2_b32 s26, s26, s27
    """)
    for g in range(4):
        L = f"o_i{g}"
        p.I(f"s_bitcmp1_b32 s27, {4*g}"); p.I(f"s_cbranch_scc0 {L}")
        for i in range(5):
            p.I(f"s_add_u32 s23, s22, {(5*g+i)*65536}")
            p.I(f"buffer_load_dwordx4 {v(OF+20*g+4*i,4)}, v{AO}, {W}, s23 offen")
        p.L(L)
    p.I(f"""
    s_cmp_eq_u32 s36, 0
    s_cbranch_scc1 o_nb
    s_mov_b32 s36, 0
    s_barrier
    """)
    p.L("o_nb")
    p.I(f"""
    s_cmp_lg_u32 s27, 0
    s_cbranch_scc1 o_loop
    s_sleep {os.environ.get("OPI", "3")}
    s_branch o_loop
    """)
    p.L("o_done")
    if os.environ.get("DLY_O"): p.I(f"s_sleep {os.environ['DLY_O']}")
    stamp(p, 9)
    T = 72
    p.I(f"""
    v_and_b32 v{T}, 31, v2
    v_lshrrev_b32 v{T+1}, 5, v2
    """)
    if os.environ.get('TST'): stamp(p, 1)
    RS = 272
    p.I(f"""
    s_mul_i32 s33, s16, {128*RS}
    s_mul_i32 s34, s15, {32*RS}
    s_add_u32 s33, s33, s34
    v_mul_u32_u24 v{T+2}, {RS}, v{T}
    v_lshl_add_u32 v{T+2}, v{T+1}, 5, v{T+2}
    v_add_u32 v{T+2}, s33, v{T+2}
    v_lshrrev_b32 v{T+3}, 4, v2
    v_and_b32 v{T+4}, 15, v2
    s_lshl_b32 s33, s14, 4
    v_add_u32 v{T+3}, s33, v{T+3}
    v_mul_u32_u24 v{T+5}, {RS}, v{T+3}
    v_lshl_add_u32 v{T+5}, v{T+4}, 4, v{T+5}
    s_lshl_b32 s33, s17, 7
    v_add_u32 v{T+3}, s33, v{T+3}
    v_mul_u32_u24 v{T+3}, 5120, v{T+3}
    v_lshl_add_u32 v{T+3}, v{T+4}, 4, v{T+3}
    s_lshl_b32 s33, s18, 8
    s_add_u32 s33, s33, 2560
    s_waitcnt lgkmcnt(0)
    s_barrier
    """)
    for t in range(2):
        for q in range(4):
            p.I(f"ds_write_b128 v{T+2}, {v(ACC+16*t+4*q,4)} offset:{(32*t+16*(q>>1)+4*(q&1))*4}")
    p.I("s_waitcnt lgkmcnt(0)")
    p.I("s_barrier")
    if os.environ.get('TST'):
        stamp(p, 10); p.I("s_waitcnt lgkmcnt(0)")
    for i in range(4):
        p.I(f"ds_read_b128 {v(OF+8*i,4)}, v{T+5} offset:{4*i*RS}")
        p.I(f"ds_read_b128 {v(OF+8*i+4,4)}, v{T+5} offset:{4*i*RS+128*RS}")
    for i in range(4):
        p.I(f"s_waitcnt lgkmcnt({6-2*i})")
        for j in range(4): p.I(f"v_add_f32 v{OF+8*i+j}, v{OF+8*i+j}, v{OF+8*i+4+j}")
        p.I(f"buffer_store_dwordx4 {v(OF+8*i,4)}, v{T+3}, {OUT}, s33 offen {os.environ.get('OST', 'sc1 nt')}")
        if i < 3: p.I(f"s_add_u32 s33, s33, {4*5120}")
    if DIAG: p.I("s_waitcnt vmcnt(0)")
    stamp(p, 11)
    stamp_flush(p, 12, 8, 14, kidx=0)
    p.I("s_endpgm")

def gen_f3(p, name=NAME + "_kernel"):
    p.R(f".p2align 8\n.type {name},@function")
    p.L(name)
    if DIAG:
        for i in range(1, 12): p.I(f"s_mov_b32 s{ST0+2*i}, 0")
    stamp(p, 0)
    p.I(f"""
    s_load_dwordx4 s[88:91], s[0:1], {KA['out']}
    s_load_dwordx2 s[4:5], s[0:1], {KA['ws']}
    s_cmp_ge_u32 s2, 512
    s_cbranch_scc1 m_exit
    v_lshrrev_b32 v1, 6, v0
    v_and_b32 v2, 63, v0
    v_readfirstlane_b32 s14, v1
    s_and_b32 s70, s2, 7
    s_bfe_u32 s71, s2, 0x50003
    s_and_b32 s15, s14, 3
    s_lshl_b32 s33, s15, 12
    s_and_b32 s28, s14, 1
    s_lshr_b32 s29, s15, 1
    s_cmp_ge_u32 s2, 256
    s_cbranch_scc1 m_s
    s_setprio {os.environ.get('QPRIO', '3')}
    s_mov_b32 s81, 0
    v_mov_b32 v16, 0
    s_and_b32 s30, s70, 1
    s_mul_i32 s31, s71, 43
    s_lshr_b32 s31, s31, 7           ; j/3
    s_mul_i32 s32, s31, 3
    s_sub_u32 s17, s71, s32          ; j%3
    s_mul_i32 s12, s30, 3
    s_add_u32 s12, s12, s17
    s_cmp_lt_u32 s71, 12
    s_cbranch_scc1 m_tm
    s_sub_u32 s32, s71, 12
    s_mul_i32 s31, s32, 52
    s_lshr_b32 s31, s31, 8           ; jj/5
    s_mul_i32 s34, s31, 5
    s_sub_u32 s17, s32, s34          ; jj%5
    s_mul_i32 s12, s30, 5
    s_add_u32 s12, s12, s17
    s_add_u32 s12, s12, 6
    s_add_u32 s17, s17, 3
    """)
    p.L("m_tm")
    p.I(f"""
    s_lshr_b32 s13, s70, 1
    s_lshl_b32 s13, s13, 2
    s_add_u32 s13, s13, s31          ; n tile
    s_mul_i32 s31, s31, 5
    s_add_u32 s31, s31, 1
    s_lshr_b32 s31, s31, 1
    s_add_u32 s17, s17, s31          ; k rotation
    s_cmp_eq_u32 s13, 15
    s_cbranch_scc1 m_noq
    s_cmp_lt_u32 s14, 4
    s_cbranch_scc1 m_qc
    """)
    def descs():
        srd(p, 8, 4, WS_SIZE); srd(p, 92, 88, OUT_BYTES); srd(p, 84, 90, 256)
    def tagload():
        p.I(f"""
        s_waitcnt lgkmcnt(0)
        s_add_u32 s6, s4, {WS_EP}
        s_addc_u32 s7, s5, 0
        s_load_dword s{TAG}, s[6:7], 0
        """)
    qkv_loader(p)
    descs()
    p.I("s_branch m_att")
    p.L("m_qc")
    tagload(); descs()
    qkv_consumer(p)
    p.I("s_branch m_att")
    p.L("m_noq")
    p.I(f"s_load_dwordx4 s[24:27], s[0:1], {KA['B_x']}")
    tagload(); descs()
    if PFA == 1:
        p.I("s_cmp_lt_u32 s14, 4"); p.I("s_cbranch_scc1 m_noq2")
        pf_qkv(p, "pfc", 15, 16, 17)
        if PFB == 2: vpf_front(p)
        p.L("m_noq2")
    p.I(f"""
    s_waitcnt vmcnt(0) lgkmcnt(0)
    s_add_u32 s{TAG}, s{TAG}, 1
    s_sleep 100
    """)
    p.L("m_att")
    def att_wait():
        wo_setup(p)
        p.I(f"""
        s_cmp_lg_u32 s14, 0
        s_cbranch_scc1 a_wait
        s_mul_i32 s33, s12, 20
        s_lshr_b32 s34, s33, 6
        s_add_u32 s33, s33, 19
        s_lshr_b32 s33, s33, 6
        s_cmp_eq_u32 s33, s34
        s_cselect_b32 s33, 1, 0x101      ; w lanes
        s_lshl_b32 s40, s33, s13
        s_mul_i32 s41, s33, 0xff
        s_lshl_b32 s34, s41, 16
        s_or_b32 s40, s40, s34
        s_mul_i32 s72, s12, {FST}
        s_add_u32 s72, s72, {WS_F1}
        """)
        if int(os.environ.get("PD", "0")): p.I(f"s_sleep {os.environ['PD']}")
        poll_flags(p, 72, 0, 120, 33, wide=True, sleep=int(os.environ.get("PI", "2")))
        p.L("a_wait")
        p.I("s_barrier")
    def att_post():
        p.I("s_cmp_lg_u32 s14, 0"); p.I("s_cbranch_scc1 a_nocount")
        count_in(p, 0)
        p.L("a_nocount")
    def xor_or():
        p.I(f"""
        v_xor_b32 v116, s{TAG}, v116
        v_xor_b32 v117, s{TAG}, v117
        v_xor_b32 v118, s{TAG}, v118
        v_xor_b32 v119, s{TAG}, v119
        v_or3_b32 v116, v116, v117, v118
        v_or_b32 v116, v116, v119
        v_cmp_ne_u32 vcc, 0, v116
        """)
    def att_fast(first_dma):
        p.I("s_cmp_eq_u32 s81, 0"); p.I("s_cbranch_scc1 a_nopub")
        q_publish(p)
        p.L("a_nopub")
        wo_setup(p)
        p.I(f"""
        s_mov_b32 s38, 0
        s_cmp_lg_u32 s14, 4
        s_cbranch_scc1 a_wait
        s_mul_i32 s33, s12, 20
        s_lshr_b32 s34, s33, 6
        s_add_u32 s33, s33, 19
        s_lshr_b32 s33, s33, 6
        s_cmp_eq_u32 s33, s34
        s_cselect_b32 s33, 1, 0x101      ; w lanes
        s_lshl_b32 s42, s33, s13
        s_mul_i32 s75, s33, 0xff
        s_lshl_b32 s74, s75, 16
        s_mul_i32 s72, s12, {FST}
        s_add_u32 s72, s72, {WS_F1}
        s_mov_b32 s38, 1
        s_mov_b32 s43, 0
        """)
        if int(os.environ.get("PD", "0")): p.I(f"s_sleep {os.environ['PD']}")
        p.L("a_fp")
        p.I(f"""
        buffer_load_dwordx4 v[116:119], v111, {W}, s72 offen sc1
        s_add_u32 s43, s43, 1
        s_waitcnt vmcnt(0)
        """)
        xor_or()
        p.I(f"""
        s_and_b64 s[40:41], vcc, s[74:75]
        s_lshr_b32 s40, s40, 16
        s_or_b32 s40, s40, s41
        s_lshr_b32 s41, s40, 8
        s_or_b32 s40, s40, s41
        s_andn2_b32 s40, 0xff, s40
        s_lshr_b32 s41, s40, 1
        s_lshl_b32 s33, s40, 7
        s_or_b32 s41, s41, s33
        s_and_b32 s40, s40, s41
        s_ff1_i32_b32 s68, s40
        s_and_b32 s41, vcc_lo, s42
        s_cselect_b32 s40, 0, s40
        s_cmp_lg_u32 s40, 0
        s_cbranch_scc1 a_fp_d
        s_sleep {os.environ.get("PI", "2")}
        s_cmp_lt_u32 s43, {SPIN}
        s_cbranch_scc1 a_fp
        """)
        p.L("a_fp_d")
        p.I("s_and_b32 s68, s68, 7")
        first_dma()
        p.L("a_wait")
        p.I("s_barrier")
    def b_issue():
        p.I("s_cmp_lg_u32 s38, 0"); p.I("s_cbranch_scc1 a_bi"); p.L("a_nb1")
    def b_check():
        p.I("s_cmp_eq_u32 s38, 0"); p.I("s_cbranch_scc0 a_bchk"); p.L("a_bok")
    if FAST:
        k2_attn.attn_body(p, "a", fast=att_fast, post=att_post, kidx=0, tail=outproj_tail, late=att_late, b_issue=b_issue, b_check=b_check)
        p.L("a_bi")
        p.I(f"""
        s_cmp_ge_u32 s26, 6
        s_cselect_b32 s38, 0, s38
        s_cbranch_scc1 a_nb1
        buffer_load_dwordx4 v[116:119], v111, {W}, s72 offen sc1
        s_branch a_nb1
        """)
        p.L("a_bchk")
        xor_or()
        p.I(f"""
        s_and_b32 s41, s75, 0x101
        s_lshl_b32 s41, s41, s68
        s_lshl_b32 s40, s41, 16
        s_and_b64 s[42:43], vcc, s[74:75]
        s_cselect_b32 s38, 1, 0
        s_and_b64 vcc, vcc, s[40:41]
        s_cbranch_scc0 a_bok
        """)
        poll_flags(p, 72, 0, 114, 33, wide=True, sleep=1, addr=111)
        p.I("s_branch a_bok")
    else:
        k2_attn.attn_body(p, "a", wait=att_wait, post=att_post, kidx=0, tail=outproj_tail, late=att_late)
    p.L("m_s")
    p.I(f"s_setprio {os.environ.get('SPRIO', '0')}")
    p.I("s_mov_b32 s81, s71")
    if PFB == 1:
        p.I("s_cmp_lt_u32 s14, 4"); p.I("s_cbranch_scc1 m_s2")
        vpf_front(p)
        p.L("m_s2")
    tagload(); descs()
    p.I(f"""
    s_waitcnt lgkmcnt(0)
    s_add_u32 s{TAG}, s{TAG}, 1
    s_barrier
    s_cmp_lg_u32 s14, 0
    s_cbranch_scc1 s_nocount
    """)
    count_in(p, 4)
    p.L("s_nocount")
    p.I(f"""
    s_and_b32 s30, s71, 30
    s_cmp_eq_u32 s30, 10
    s_cbranch_scc1 s_idle
    s_cmp_lt_u32 s14, 4
    s_cbranch_scc1 s_cons
    s_cmp_ge_u32 s71, 12
    s_cbranch_scc1 l_bu
    """)
    for _ in range(int(os.environ.get('YN', '3'))): p.I(f"s_sleep {os.environ.get('YS', '110')}")
    p.I("s_branch l_y")
    p.L("l_bu")
    bud = int(os.environ.get("BUD", "0"))
    while bud > 0:
        p.I(f"s_sleep {min(bud, 127)}"); bud -= 127
    buq = int(os.environ.get("BUQ", "0"))
    if buq:
        p.I(f"""
        s_sub_u32 s30, s71, 12
        s_mul_i32 s30, s30, 52
        s_lshr_b32 s30, s30, 8
        s_lshr_b32 s31, s70, 1
        s_lshl_b32 s31, s31, 2
        s_add_u32 s30, s30, s31
        s_cmp_ge_u32 s30, {os.environ.get("NQ", "5")}
        s_cbranch_scc1 l_bu2
        """)
        while buq > 0:
            p.I(f"s_sleep {min(buq, 127)}"); buq -= 127
        p.L("l_bu2")
    bu_loader(p, None)
    p.I("s_endpgm")
    p.L("l_y")
    p.I("s_setprio 3")
    p.I("s_waitcnt vmcnt(0)")
    y_loader(p)
    p.I("s_endpgm")
    p.L("s_cons")
    p.I("s_cmp_lt_u32 s71, 12"); p.I("s_cbranch_scc1 c_y")
    bu_consumer(p)
    p.I("s_branch c_end")
    p.L("c_y")
    y_consumer(p)
    p.L("c_end")
    p.I(f"""
    s_cmp_lg_u32 s14, 0
    s_cbranch_scc1 c_fin
    s_cmp_lg_u32 s2, 511
    s_cbranch_scc1 c_fin
    s_mov_b32 s30, 0
    v_mov_b32 v4, 0
    """)
    p.L("c_ep")
    p.I(f"""
    buffer_load_dword v5, v4, {DBG}, 0 offen sc1
    s_add_u32 s30, s30, 1
    s_waitcnt vmcnt(0)
    v_readfirstlane_b32 s31, v5
    s_cmp_ge_u32 s31, 512
    s_cbranch_scc1 c_ep_d
    s_sleep 16
    s_cmp_lt_u32 s30, {SPIN}
    s_cbranch_scc1 c_ep
    """)
    p.L("c_ep_d")
    p.I(f"s_mov_b32 s30, {WS_EP}")
    put_flag(p, 30, 4)
    p.L("c_fin")
    stamp_flush(p, 11, 8, 14, kidx=0)
    p.I("s_endpgm")
    p.L("s_idle")
    WPF = int(os.environ.get("WPF", "5"))
    if WPF:
        p.I(f"""
        s_load_dwordx2 s[20:21], s[0:1], {KA['wo']}
        v_lshlrev_b32 v16, 7, v2
        s_and_b32 s34, s71, 1
        s_lshl_b32 s34, s34, 3
        s_add_u32 s34, s34, s14
        s_mul_i32 s34, s34, {400*128}
        s_waitcnt lgkmcnt(0)
        """)
        srd(p, 36, 20, 640*640*2)
        for _ in range(WPF): p.I("s_sleep 110")
        for i in range(7):
            p.I(f"buffer_load_dword v17, v16, s[36:39], s34 offen")
            p.I(f"s_add_u32 s34, s34, {8192 if i < 5 else 2048}")
            p.I("s_waitcnt vmcnt(0)")
    p.L("m_exit")
    p.I("s_endpgm")
    return dict(name=name, grid=512, block=512, lds=81920, vgpr=128)
```

```python
from engine import *

PFA = int(os.environ.get("PFA", "1")); PFB = int(os.environ.get("PFB", "1"))
def pf_qkv(p, name, sw, vt, vd):
    p.I(f"""
    v_lshlrev_b32 v{vt}, 7, v2
    s_mul_i32 s40, s2, 10240
    s_mul_i32 s41, s{sw}, 5120
    s_add_u32 s40, s40, s41
    s_mul_i32 s41, s2, 9600
    s_mul_i32 s42, s{sw}, 4480
    s_add_u32 s41, s41, s42
    s_sub_u32 s41, s41, 8960
    s_mov_b32 s38, {2048*640*2}
    s_cmp_ge_u32 s{sw}, 2
    s_cselect_b32 s36, s6, s4
    s_cselect_b32 s37, s7, s5
    s_cselect_b32 s38, {640*1920*2}, s38
    s_cselect_b32 s40, s41, s40
    s_and_b32 s37, s37, 0xffff
    s_mov_b32 s39, 0x00020000
    s_mov_b32 exec_hi, 0xff
    buffer_load_dword v{vd}, v{vt}, s[36:39], s40 offen
    s_mov_b64 exec, -1
    """)
def vpf_front(p):
    p.I(f"""
    s_lshl_b32 s34, s28, 3
    s_add_u32 s34, s34, {KA['Bre'] - 16}
    s_cmp_ge_u32 s28, 2
    s_cselect_b32 s34, s34, {KA['A_x']}
    s_load_dwordx2 s[36:37], s[0:1], s34
    v_lshlrev_b32 v16, 7, v2
    s_and_b32 s35, s2, 255
    s_mul_i32 s40, s35, 10240
    s_mul_i32 s41, s28, 5120
    s_add_u32 s40, s40, s41
    s_mul_i32 s41, s35, 3200
    s_mov_b32 s38, {2048*640*2}
    s_cmp_ge_u32 s28, 2
    s_cselect_b32 s38, {640*640*2}, s38
    s_cselect_b32 s40, s41, s40
    s_cselect_b32 s42, 0x1ffffff, -1
    s_cselect_b32 s43, 0, 0xff
    s_mov_b32 s39, 0x00020000
    s_waitcnt lgkmcnt(0)
    s_and_b32 s37, s37, 0xffff
    """)
    p.I(f"""
    s_mov_b64 exec, s[42:43]
    buffer_load_dword v17, v16, s[36:39], s40 offen
    s_mov_b64 exec, -1
    """)
def gen_k1(p, name="qkv_kernel", loop=True, **kw):
    R = Opnd("kc", 128); C = Opnd("tr", 128)
    if not kw: kw = dict(NS=5)
    E = Engine(R, C, 10, **kw)
    p.R(f".p2align 8\n.type {name},@function")
    p.L(name)
    stamp(p, 0)
    p.I(f"""
    s_load_dwordx4 s[4:7], s[0:1], {KA['B_x']}
    s_load_dwordx2 s[8:9], s[0:1], {KA['ws']}
    s_cmp_ge_u32 s2, 256
    s_cbranch_scc1 {name}_exit
    s_and_b32 s10, s2, 7
    s_lshr_b32 s11, s2, 3
    s_and_b32 s12, s10, 3
    s_lshl_b32 s12, s12, 2
    s_and_b32 s13, s11, 3
    s_add_u32 s12, s12, s13          ; m tile
    s_lshr_b32 s13, s10, 2
    s_lshl_b32 s13, s13, 3
    s_lshr_b32 s14, s11, 2
    s_add_u32 s13, s13, s14          ; n tile
    v_lshrrev_b32 v1, 6, v0
    v_and_b32 v2, 63, v0             ; lane
    v_readfirstlane_b32 s15, v1
    s_cmp_eq_u32 s13, 15
    s_cbranch_scc1 {name}_side
    s_cmp_lt_u32 s15, 4
    s_cbranch_scc1 {name}_cons
    """)
    p.I(f"""
    s_sub_u32 s28, s15, 4
    s_waitcnt lgkmcnt(0)
    """)
    if PFA: pf_qkv(p, name + "_pfa", 28, 16, 17)
    p.I(f"""
    s_lshl_b32 s29, s28, 12
    s_lshl_b32 s30, s12, 7           ; T0
    s_lshl_b32 s31, s28, 5
    s_add_u32 s30, s30, s31
    s_mul_i32 s30, s30, 1280
    v_lshrrev_b32 v3, 3, v2          ; l>>3
    v_mul_u32_u24 v3, 1280, v3
    v_add_u32 v3, s30, v3
    v_lshrrev_b32 v12, 4, v2         ; l>>4
    v_and_b32 v13, 7, v2
    v_xor_b32 v14, v13, v12
    v_xor_b32 v15, 4, v14
    v_lshl_add_u32 v4, v14, 4, v3
    v_lshl_add_u32 v5, v15, 4, v3
    v_add_u32 v5, {10240-1024}, v5
    v_add_u32 v6, {2*(10240-1024)}, v4
    v_add_u32 v7, {2*(10240-1024)}, v5
    s_lshl_b32 s31, s28, 4
    s_mul_i32 s31, s31, 3840
    s_lshl_b32 s32, s13, 8           ; F0*2
    s_add_u32 s31, s31, s32
    v_mul_u32_u24 v3, 3840, v12
    v_add_u32 v3, s31, v3
    v_and_b32 v13, 15, v2
    v_lshlrev_b32 v14, 2, v12
    v_xor_b32 v13, v13, v14
    v_lshl_add_u32 v8, v13, 4, v3
    v_add_u32 v9, {15360-1024}, v8
    v_add_u32 v10, {2*(15360-1024)}, v8
    v_add_u32 v11, {3*(15360-1024)}, v8
    s_waitcnt lgkmcnt(0)
    """)
    srd(p, 16, 4, 2048*640*2)
    srd(p, 20, 6, 640*1920*2)
    if DIAG: srd(p, 24, 8, WS_SIZE)
    p.I(f"""
    s_and_b32 s34, s11, 3
    s_mul_i32 s34, s34, 5
    s_add_u32 s34, s34, 1
    s_lshr_b32 s34, s34, 1           ; 0,3,5,8
    s_lshr_b32 s35, s11, 2
    s_add_u32 s34, s34, s35
    """)
    kmod(p, 34, 10)
    p.I(f"s_mul_i32 s35, s34, {64*3840}"); p.I("s_lshl_b32 s34, s34, 7")
    def issue(st, which, off):
        p.I(f"s_add_u32 m0, s29, {off}")
        for i in range(4):
            p.I(f"buffer_load_dwordx4 v{4+4*which+i}, s[{16+4*which}:{19+4*which}], s{34+which} offen offset:{i*1024} lds")
        kadv(p, 34 + which, 128 if which == 0 else 64*3840, 10)
    stamp(p, 1)
    E.loader(p, issue, stamps=True)
    stamp_flush(p, 26, 24, 15)
    p.I("s_endpgm")

    p.L(f"{name}_cons")
    AD = 4; FR = 28; ACC = 60; EA = 124
    assert AD + E.naddr() <= FR and FR + 2 * E.fr_per <= ACC
    p.I(f"""
    s_and_b32 s28, s15, 1            ; wm
    s_lshr_b32 s29, s15, 1           ; wn
    """)

    E.cons_setup(p, AD, 2, 28, 29, FR, 30)
    for i in range(64): p.I(f"v_mov_b32 v{ACC+i}, 0")
    p.I(f"""
    v_and_b32 v126, 31, v2
    v_lshrrev_b32 v127, 5, v2
    s_waitcnt lgkmcnt(0)
    """)
    srd(p, 24, 8, WS_SIZE)
    stamp(p, 1)
    if DIAG: p.I("s_waitcnt lgkmcnt(0)")
    p.I(f"""
    s_cmp_ge_u32 s13, 10
    s_cbranch_scc1 {name}_consV
    """)
    E.consumer(p, AD, FR, ACC, False, 34, f"{name}_lqk", loop)
    stamp(p, 2)
    p.I(f"""
    s_lshl_b32 s30, s13, 4           ; F0/8
    s_lshl_b32 s31, s29, 3           ; 8*wn
    s_add_u32 s30, s30, s31
    s_lshl_b32 s30, s30, 15          ; piece*32768
    s_lshl_b32 s31, s12, 11          ; T0*16
    s_add_u32 s30, s30, s31
    s_lshl_b32 s31, s28, 10          ; wm*64*16
    s_add_u32 s30, s30, s31
    v_lshlrev_b32 v4, 15, v127
    v_lshl_add_u32 v4, v126, 4, v4
    v_add_u32 v4, s30, v4
    """)
    n = 0
    for t in range(2):
        for ap in range(2):
            p.I(f"s_mov_b32 s{32+(n%2)}, {WS_QK + (4*t+2*ap)*32768}")
            for u in range(2):
                d = ACC + 32 * t + 16 * u + 8 * ap
                o = FR + 4 * ((2 * n + u) % 8)
                for j in range(4):
                    p.I(f"v_cvt_pk_bf16_f32 v{o+j}, v{d+2*j}, v{d+2*j+1}")
                p.I(f"buffer_store_dwordx4 {v(o,4)}, v4, s[24:27], s{32+(n%2)} offen offset:{u*512}")
            n += 1
    stamp(p, 3)
    if PFB:
        p.I("s_mov_b32 s28, s15"); vpf_front(p)
    if DIAG: p.I("s_waitcnt vmcnt(0)")
    stamp(p, 4)
    stamp_flush(p, 6, 24, 15)
    p.I("s_endpgm")
    p.L(f"{name}_consV")

    p.I(f"""
    v_and_b32 v1, 19, v126           ; 16g + i
    v_bfe_u32 v28, v126, 2, 1         ; c&1
    v_bfe_u32 v3, v126, 3, 1         ; c>>1
    v_lshl_add_u32 v1, v28, 3, v1
    v_lshl_add_u32 v1, v3, 2, v1
    s_sub_u32 s30, s13, 10
    s_lshl_b32 s30, s30, 7
    s_lshl_b32 s31, s29, 6
    s_add_u32 s30, s30, s31
    v_add_u32 v1, s30, v1
    s_lshl_b32 s31, s12, 2
    s_lshl_b32 s32, s28, 1
    s_add_u32 s31, s31, s32
    s_mul_i32 s31, s31, 1280
    s_add_u32 s31, s31, {WS_V}
    s_mov_b32 s35, 81920
    """)
    for t in range(2):
        T = FR
        p.I(f"""
        v_add_u32 v{T}, {32*t}, v1             ; fv
        v_mul_u32_u24 v{T+1}, 3277, v{T}
        v_lshrrev_b32 v{T+1}, 16, v{T+1}        ; head
        v_mul_u32_u24 v{T+2}, 20, v{T+1}
        v_sub_u32 v{T+2}, v{T}, v{T+2}          ; d
        v_and_b32 v{T+3}, 1, v{T+1}
        v_lshlrev_b32 v{T+3}, 2, v{T+3}
        v_sub_u32 v{T+2}, v{T+2}, v{T+3}        ; d-4*odd
        v_add_u32 v{T+4}, 20, v{T+2}
        v_cmp_gt_i32 vcc, 0, v{T+2}
        v_cndmask_b32 v{T+2}, v{T+2}, v{T+4}, vcc    ; e
        v_and_b32 v{T+4}, 3, v{T+2}
        v_bfe_u32 v{T+5}, v{T+2}, 2, 1
        v_bfe_u32 v{T+6}, v{T+2}, 3, 1
        v_lshl_add_u32 v{T+4}, v{T+5}, 3, v{T+4}
        v_lshl_add_u32 v{T+4}, v{T+6}, 2, v{T+4}
        v_cmp_gt_u32 vcc, 16, v{T+2}
        v_cndmask_b32 v{T+2}, v{T+2}, v{T+4}, vcc    ; slot
        v_mul_lo_u32 v{T+1}, v{T+1}, s35
        v_lshl_add_u32 v{T+1}, v{T+2}, 4, v{T+1}
        v_mul_u32_u24 v{T+3}, 320, v127
        v_add3_u32 v{124+t}, v{T+1}, v{T+3}, s31
        """)
    E.consumer(p, AD, FR, ACC, True, 34, f"{name}_lv", loop)
    stamp(p, 2)
    n = 0
    for t in range(2):
        for u in range(2):
            for aa in range(2):
                d = ACC + 32 * t + 16 * u + 8 * aa
                o = FR + 4 * (n % 8)
                for j in range(4):
                    p.I(f"v_cvt_pk_bf16_f32 v{o+j}, v{d+2*j}, v{d+2*j+1}")
                p.I(f"buffer_store_dwordx4 {v(o,4)}, v{124+t}, s[24:27], 0 offen offset:{u*1280+aa*640}")
                n += 1
    stamp(p, 3)
    if PFB:
        p.I("s_mov_b32 s28, s15"); vpf_front(p)
    if DIAG: p.I("s_waitcnt vmcnt(0)")
    stamp(p, 4)
    stamp_flush(p, 6, 24, 15)
    p.I("s_endpgm")
    p.L(f"{name}_side")
    p.I("s_waitcnt lgkmcnt(0)")
    srd(p, 24, 8, WS_SIZE)
    p.I("s_and_b32 s28, s15, 3")
    p.I("s_cmp_ge_u32 s15, 4"); p.I(f"s_cbranch_scc1 {name}_side2")
    if PFA: pf_qkv(p, name + "_pfc", 28, 16, 17)
    p.I(f"s_branch {name}_side3")
    p.L(f"{name}_side2")
    if PFB:
        p.I("s_sleep 127"); vpf_front(p)
    p.L(f"{name}_side3")
    p.I(f"""
    s_mul_i32 s30, s12, 10240
    s_add_u32 s30, s30, {WS_E}
    v_lshlrev_b32 v4, 4, v0
    v_mov_b32 v8, -1
    v_mov_b32 v9, -1
    v_mov_b32 v10, -1
    v_mov_b32 v11, -1
    buffer_store_dwordx4 v[8:11], v4, s[24:27], s30 offen
    s_add_u32 s30, s30, 2048
    buffer_store_dwordx4 v[8:11], v4, s[24:27], s30 offen
    s_mul_i32 s30, s12, {FST}
    s_add_u32 s31, s30, {WS_F3}
    s_add_u32 s30, s30, {WS_F2}
    v_lshlrev_b32 v4, 2, v0
    buffer_store_dword v8, v4, s[24:27], s30 offen
    buffer_store_dword v8, v4, s[24:27], s31 offen
    s_lshl_b32 s30, s12, 11
    s_add_u32 s30, s30, {WS_GO}
    buffer_store_dword v8, v4, s[24:27], s30 offen
    """)
    p.L(f"{name}_exit")
    p.I("s_endpgm")
    return dict(name=name, grid=256, block=512, lds=E.lds, vgpr=128)
```

```python
from common import *
import struct, math
CSCALE = struct.unpack("<I", struct.pack("<f", math.log2(math.e) / math.sqrt(20.0)))[0]
SLOT = 24576
PRIOS = eval(os.environ.get('PRIOS', '{}'))
BPH = int(os.environ.get('BPH', '4'))
MPOS = eval(os.environ.get('MPOS', 'None'))
NCH = 8

QF = 4
OA = 20
SX = 52
PP = 84
K1 = 92
K2 = 96
VA = 100
VB = 104
AK1, AK2, AV, VOFF = 108, 109, 110, 111
T0 = 112

def attn_body(p, name, WSRD=8, wait=None, post=None, kidx=1, b_issue=None, b_check=None, tail=None, early_wait=False, late=None, setup2=None, fast=None):
    W = f"s[{WSRD}:{WSRD+3}]"
    p.I(f"""
    s_and_b32 s12, s2, 7
    s_bfe_u32 s13, s2, 0x50003
    s_lshl_b32 s12, s12, 2
    s_and_b32 s17, s13, 3
    s_add_u32 s12, s12, s17           ; head
    s_lshr_b32 s13, s13, 2            ; q block
    s_and_b32 s15, s14, 3             ; qg
    s_lshr_b32 s16, s14, 2            ; kh
    s_lshr_b32 s28, s12, 1            ; hp
    s_and_b32 s29, s12, 1             ; odd
    s_mul_i32 s30, s28, 5             ; 5hp
    s_mul_i32 s31, s29, 3
    s_add_u32 s31, s31, s30
    s_add_u32 s30, s30, 2
    v_lshlrev_b32 v{VOFF}, 4, v2      ; lane*16
    s_mul_i32 s24, s14, 3072          ; m0 base
    s_cmp_ge_u32 s14, 4
    s_cbranch_scc1 {name}_vsrc
    """)
    for i in range(3):
        p.I(f"""
        s_mul_i32 s33, s14, 3
        s_add_u32 s33, s33, {i}
        s_lshr_b32 s34, s33, 2
        s_and_b32 s33, s33, 3
        s_add_u32 s35, s31, s34
        s_cmp_eq_u32 s34, 2
        s_cselect_b32 s35, s30, s35
        s_add_u32 s35, s35, 80
        s_lshl_b32 s35, s35, 15
        s_lshl_b32 s33, s33, 10
        s_add_u32 s35, s35, s33
        s_add_u32 s{20+i}, s35, {WS_QK - i*1024}
        """)
    p.I(f"""
    s_movk_i32 s23, 4096
    s_branch {name}_srcdone
    """)
    p.L(f"{name}_vsrc")
    p.I(f"""
    s_mul_i32 s33, s12, 81920
    s_add_u32 s33, s33, s24
    s_add_u32 s20, s33, {WS_V - 12*1024}
    s_cmp_eq_u32 s14, 7
    s_cselect_b32 s33, 1024, 0
    s_sub_u32 s21, s20, s33
    s_sub_u32 s22, s21, s33
    s_movk_i32 s23, 10240
    """)
    p.L(f"{name}_srcdone")
    def dma(slot_sgpr_or_imm):
        p.I(f"s_add_u32 m0, s24, {slot_sgpr_or_imm}")
        for i in range(3):
            p.I(f"buffer_load_dwordx4 v{VOFF}, {W}, s{20+i} offen offset:{i*1024} lds")
        if fast:
            p.I("s_add_u32 s68, s68, 1"); p.I("s_and_b32 s68, s68, 7"); p.I("s_cselect_b32 s33, s23, s69")
        for i in range(3):
            p.I(f"s_add_u32 s{20+i}, s{20+i}, {'s33' if fast else 's23'}")
    p.I(f"""
    v_and_b32 v{T0}, 31, v2
    v_lshrrev_b32 v{T0+1}, 5, v2          ; h
    s_lshl_b32 s33, s13, 8
    s_lshl_b32 s34, s15, 6
    s_add_u32 s33, s33, s34
    s_lshl_b32 s33, s33, 4
    v_lshl_add_u32 v{T0+2}, v{T0}, 4, s33         ; token*16
    v_lshl_add_u32 v{T0+3}, v{T0+1}, 15, v{T0+2}  ; + h*32768
    s_lshl_b32 s32, s31, 15
    s_lshl_b32 s35, s30, 15
    s_lshl_b32 s36, s29, 3
    s_add_u32 s35, s35, s36
    s_lshl_b32 s33, s16, 11
    v_lshlrev_b32 v{AK1}, 12, v{T0+1}              ; h*4096
    v_lshl_add_u32 v{AK1}, v{T0}, 4, v{AK1}
    v_add_u32 v{AK1}, s33, v{AK1}
    s_add_u32 s34, s33, s36
    s_add_u32 s34, s34, 8192
    v_add_u32 v{AK2}, s34, v{VOFF}
    s_mul_i32 s33, s16, 5120
    s_add_u32 s33, s33, 12288
    v_mul_u32_u24 v{AV}, 320, v{T0+1}
    v_lshl_add_u32 v{AV}, v{T0}, 4, v{AV}
    v_add_u32 v{AV}, s33, v{AV}
    s_mov_b32 s18, 0x000fffff
    s_mov_b32 s19, 0x000fffff
    v_mov_b32 v{T0+4}, 0x3f803f80
    v_cmp_eq_u32 vcc, 20, v{T0}
    v_cndmask_b32 v{T0+5}, 0, v{T0+4}, vcc
    """)
    def inits():
        for i in range(8): p.I(f"v_mov_b32 v{VA+i}, v{T0+5}")
        for i in range(32): p.I(f"v_mov_b32 v{OA+i}, 0")
        for i in range(8): p.I(f"v_mov_b32 v{PP+i}, 0")
        for i in range(4): p.I(f"v_mov_b32 v{SX+28+i}, 0")
    if not early_wait: inits()
    if fast:
        def first_dma():
            p.I(f"s_lshl_b32 s33, s13, 12")
            p.I(f"s_lshl_b32 s34, s68, 12")
            for pc in range(3):
                p.I(f"s_add_u32 s37, s31, {pc}" if pc < 2 else "s_mov_b32 s37, s30")
                p.I(f"s_lshl_b32 s37, s37, 15")
                p.I(f"s_add_u32 s39, s37, s33")
                p.I(f"s_mov_b32 m0, {2*SLOT+pc*4096}")
                for i in range(4): p.I(f"buffer_load_dwordx4 v{VOFF}, {W}, s39 offen offset:{i*1024} lds")
                p.I(f"s_add_u32 s39, s37, s34")
                p.I(f"s_add_u32 s39, s39, {80*32768}")
                p.I(f"s_mov_b32 m0, {pc*4096}")
                for i in range(4): p.I(f"buffer_load_dwordx4 v{VOFF}, {W}, s39 offen offset:{i*1024} lds")
            p.I(f"s_mul_i32 s39, s12, 81920"); p.I(f"s_mul_i32 s34, s68, 10240")
            p.I(f"s_add_u32 s39, s39, s34"); p.I(f"s_add_u32 s39, s39, {WS_V}")
            for g in range(3):
                p.I(f"s_mov_b32 m0, {12288+g*4096}")
                for i in range(4 if g < 2 else 2): p.I(f"buffer_load_dwordx4 v{VOFF}, {W}, s39 offen offset:{i*1024} lds")
                if g < 2: p.I("s_add_u32 s39, s39, 4096")
            p.I(f"""
            v_mov_b32 v{T0+6}, {3*SLOT}
            v_mov_b32 v{T0+7}, s68
            ds_write_b32 v{T0+6}, v{T0+7}
            s_waitcnt vmcnt(0) lgkmcnt(0)
            """)
        p.I(f"""
        s_lshl_b32 s33, s15, 10
        s_add_u32 s33, s33, {2*SLOT}
        v_lshl_add_u32 v{K1}, v{T0}, 4, s33
        v_lshl_add_u32 v{K1+1}, v{T0+1}, 12, v{K1}
        v_add_u32 v{K1}, s36, v{K1}
        v_mov_b32 v{K1+2}, {3*SLOT}
        s_mul_i32 s69, s23, -7
        """)
        fast(first_dma)
        stamp(p, 7)
        if DIAG: p.I("s_waitcnt lgkmcnt(0)")
        p.I(f"ds_read_b32 v{K1+3}, v{K1+2}")
        for x in range(2):
            p.I(f"ds_read_b128 {v(SX+8*x,4)}, v{K1+1} offset:{512*x}")
            p.I(f"ds_read_b64 {v(SX+8*x+4,2)}, v{K1} offset:{8192+512*x}")
        p.I(f"""
        s_waitcnt lgkmcnt(4)
        v_readfirstlane_b32 s68, v{K1+3}
        s_add_u32 s68, s68, 1
        s_and_b32 s68, s68, 7
        s_mul_i32 s33, s68, s23
        s_add_u32 s20, s20, s33
        s_add_u32 s21, s21, s33
        s_add_u32 s22, s22, s33
        """)
        dma(SLOT)
    else:
        if wait: wait()
        stamp(p, 7)
        for x in range(2):
            p.I(f"buffer_load_dwordx4 {v(SX+8*x,4)}, v{T0+3}, {W}, s32 offen offset:{512*x}")
            p.I(f"buffer_load_dwordx2 {v(SX+8*x+4,2)}, v{T0+2}, {W}, s35 offen offset:{512*x}")
        dma(0)
        dma(SLOT)
    if early_wait: inits()
    if setup2: setup2()
    p.I(f"s_mov_b32 s33, {CSCALE:#x}")
    p.I(f"v_cmp_eq_u32 vcc, 0, v{T0+1}")
    p.I("s_waitcnt lgkmcnt(0)" if fast else "s_waitcnt vmcnt(6)")
    for x in range(2):
        for j in range(6):
            src = SX + 8 * x + j
            p.I(f"""
            v_lshlrev_b32 v{T0+6}, 16, v{src}
            v_and_b32 v{T0+7}, 0xffff0000, v{src}
            v_mul_f32 v{T0+6}, s33, v{T0+6}
            v_mul_f32 v{T0+7}, s33, v{T0+7}
            """)
            if j < 4:
                p.I(f"v_cvt_pk_bf16_f32 v{QF+8*x+j}, v{T0+6}, v{T0+7}")
            else:
                p.I(f"""
                v_cvt_pk_bf16_f32 v{T0+6}, v{T0+6}, v{T0+7}
                v_cndmask_b32 v{QF+8*x+j}, 0, v{T0+6}, vcc
                v_cndmask_b32 v{QF+8*x+j+2}, v{T0+6}, 0, vcc
                """)
    if DIAG: p.I("s_waitcnt lgkmcnt(0)")
    if not fast:
        p.I("s_waitcnt vmcnt(3)")
        p.I("s_barrier")
    if post: post()
    def rdK1(kt): return [f"ds_read_b128 {v(K1,4)}, v{AK1} offset:{kt*512}"]
    def rdK2(u): return [f"ds_read_b64 {v(K2,2)}, v{AK2} offset:{u*1024}"]
    def rdV(reg, kt, aa): return ["s_mov_b64 exec, s[18:19]", f"ds_read_b128 {v(reg,4)}, v{AV} offset:{kt*1280+aa*640}", "s_mov_b64 exec, -1"]
    def QK1(S, x): return f"v_mfma_f32_32x32x16_bf16 {v(S,16)}, {v(K1,4)}, {v(QF+8*x,4)}, 0"
    def QK2(S, x, par): return f"v_mfma_f32_32x32x8_bf16 {v(S,16)}, {v(K2,2)}, {v(QF+8*x+4+2*par,2)}, {v(S,16)}"
    def PV(x, aa): return f"v_mfma_f32_32x32x16_bf16 {v(OA+16*x,16)}, {v(VB if aa else VA,4)}, {v(PP+4*aa,4)}, {v(OA+16*x,16)}"
    if MPOS:
        PQ = 120
        def Pb(ph): return PP if ph % 2 == 0 else PQ
        def PV2(x, aa, pb): return f"v_mfma_f32_32x32x16_bf16 {v(OA+16*x,16)}, {v(VB if aa else VA,4)}, {v(pb+4*aa,4)}, {v(OA+16*x,16)}"
        for i in range(8): p.I(f"v_mov_b32 v{PQ+i}, 0")
        for r in rdK1(0) + rdK2(0): p.I(r)
        p.I(f"""
        s_mov_b32 s26, 0
        s_mov_b32 s25, {2*SLOT}
        s_mov_b32 s37, 0
        s_movk_i32 s39, {SLOT}
        s_waitcnt lgkmcnt(0)
        """)
        p.I(QK1(SX, 0)); p.I(QK2(SX, 0, 0))
        if DIAG:
            stamp(p, 4); cstamp(p, 5); p.I("s_waitcnt lgkmcnt(0)")
        if PRIOS: p.I(f"s_setprio {PRIOS[max(PRIOS)]}")
        p.I("s_nop 7"); p.I("s_nop 3")
        ev = []
        order = sorted(range(4), key=lambda i: (MPOS[i], i))
        for ph in range(8):
            U, n = divmod(ph, 4)
            x = n & 1
            X = SX + 16 * (ph & 1); Y = SX + 16 * ((ph + 1) & 1)
            nx = (n + 1) & 1; npar = ((n + 1) >> 1) & 1
            lastU = (U == 1)
            val = []
            for i in range(16):
                val.append(f"v_exp_f32 v{X+i}, v{X+i}")
                if i >= 2 and i % 2 == 0: val.append(f"v_cvt_pk_bf16_f32 v{Pb(ph)+i//2-1}, v{X+i-2}, v{X+i-1}")
            val[-1], val[-2] = val[-2], val[-1]
            val.append(f"v_cvt_pk_bf16_f32 v{Pb(ph)+7}, v{X+14}, v{X+15}")
            assert len(val) == 24
            if PRIOS and ph in PRIOS: ev.append(("v", f"s_setprio {PRIOS[ph]}"))
            pend = list(order)
            for k in range(25):
                vr = []
                while pend and MPOS[pend[0]] == k:
                    m = pend.pop(0)
                    if m == 0:
                        ev.append(("m", QK1(Y, nx), "K1"))
                        if n == 0: ev.append(("r", "K1", rdK1(2 * U + 1)[0]))
                        if ph == BPH and b_issue: ev.append(("x", "bi"))
                        if n == 2:
                            if lastU: ev.append(("x", "bar"))
                            ev.append(("r", "K1", rdK1(0 if lastU else 2 * U + 2)[0]))
                    elif m == 1:
                        ev.append(("m", QK2(Y, nx, npar), "K2"))
                        if n == 2:
                            ev.append(("r", "K2", rdK2(0 if lastU else U + 1)[0]))
                    else:
                        aa = m - 2
                        ev.append(("m", PV2(1 - x, aa, Pb(ph - 1)), "V%d" % aa))
                        if n in (0, 2): vr.append(("r", "V%d" % aa, rdV(VB if aa else VA, 2 * U + n // 2, aa)[1]))
                if vr:
                    ev.append(("v", "s_mov_b64 exec, s[18:19]")); ev += vr; ev.append(("v", "s_mov_b64 exec, -1"))
                if k < 24: ev.append(("v", val[k]))
                if k == 20 and n == 2 and lastU: ev.append(("x", "dma"))
            if n == 2 and lastU: ev.append(("v", f"v_add_u32 v{AV}, s27, v{AV}"))
        p.R(".p2align 6")
        p.L(f"{name}_loop")
        N = len(ev)
        for i, e in enumerate(ev):
            if e[0] == "v": p.I(e[1])
            elif e[0] == "r": p.I(e[2])
            elif e[0] == "m":
                cnt = 0; j = i - 1; fresh = None
                while True:
                    e2 = ev[j % N]
                    if e2[0] == "r":
                        if e2[1] == e[2]: fresh = True; break
                        cnt += 1
                    if e2[0] == "m" and e2[2] == e[2]: fresh = False; break
                    j -= 1
                if fresh: p.I(f"s_waitcnt lgkmcnt({cnt})")
                p.I(e[1])
            elif e[1] == "bi": b_issue()
            elif e[1] == "bar":
                p.I(f"s_cmp_eq_u32 s26, {NCH-1}"); p.I(f"s_cbranch_scc1 {name}_nw")
                p.I("s_waitcnt vmcnt(0)")
                p.L(f"{name}_nw")
                if b_check: b_check()
                p.I(f"""
                s_barrier
                s_cmp_eq_u32 s37, {2*SLOT}
                s_cselect_b32 s27, {(-2*SLOT) & 0xffffffff:#x}, s39
                s_add_u32 s37, s37, s27
                v_add_u32 v{AK1}, s27, v{AK1}
                v_add_u32 v{AK2}, s27, v{AK2}
                """)
            else:
                p.I(f"""
                s_cmp_ge_u32 s26, {NCH-2}
                s_cbranch_scc1 {name}_nodma
                """)
                dma("s25")
                p.I(f"""
                s_cmp_eq_u32 s25, {2*SLOT}
                s_cselect_b32 s33, {(-2*SLOT) & 0xffffffff:#x}, s39
                s_add_u32 s25, s25, s33
                """)
                p.L(f"{name}_nodma2")
        p.I(f"""
        s_add_u32 s26, s26, 1
        s_cmp_lt_u32 s26, {NCH}
        s_cbranch_scc1 {name}_loop
        """)
        p.I(PV2(1, 0, Pb(7))); p.I(PV2(1, 1, Pb(7)))
    else:
        for r in rdK1(0) + rdK2(0) + rdV(VA, 0, 0): p.I(r)
        p.I(f"""
        s_mov_b32 s26, 0
        s_mov_b32 s25, {2*SLOT}
        s_mov_b32 s37, 0
        s_movk_i32 s39, {SLOT}
        s_waitcnt lgkmcnt(1)
        """)
        p.I(QK1(SX, 0)); p.I(QK2(SX, 0, 0))
        if DIAG:
            stamp(p, 4); cstamp(p, 5); p.I("s_waitcnt lgkmcnt(0)")
        if PRIOS: p.I(f"s_setprio {PRIOS[max(PRIOS)]}")
        p.I("s_nop 7"); p.I("s_nop 3")
        p.R(".p2align 6")
        p.L(f"{name}_loop")
        for ph in range(8):
            U, n = divmod(ph, 4)
            x = n & 1
            X = SX + 16 * (ph & 1); Y = SX + 16 * ((ph + 1) & 1)
            nx = (n + 1) & 1; npar = ((n + 1) >> 1) & 1
            lastU = (U == 1)
            def gap(g):
                e = [f"v_exp_f32 v{X+4*g+i}, v{X+4*g+i}" for i in range(4)]
                if g == 0: c = [f"v_cvt_pk_bf16_f32 v{PP+6+i}, v{Y+12+2*i}, v{Y+13+2*i}" for i in range(2)]
                else: c = [f"v_cvt_pk_bf16_f32 v{PP+2*(g-1)+i}, v{X+4*(g-1)+2*i}, v{X+4*(g-1)+2*i+1}" for i in range(2)]
                for ins in (e[0], c[0], e[1], e[2], c[1], e[3]): p.I(ins)
            if PRIOS and ph in PRIOS: p.I(f"s_setprio {PRIOS[ph]}")
            gap(0)
            if n in (1, 3): p.I(f"s_waitcnt lgkmcnt({1 if n == 1 else 2})")
            p.I(QK1(Y, nx))
            if n == 0:
                for r in rdK1(2 * U + 1): p.I(r)
            if ph == BPH and b_issue: b_issue()
            if n == 2:
                if lastU:
                    p.I(f"s_cmp_eq_u32 s26, {NCH-1}"); p.I(f"s_cbranch_scc1 {name}_nw")
                    p.I("s_waitcnt vmcnt(0)")
                    p.L(f"{name}_nw")
                    if b_check: b_check()
                    p.I(f"""
                    s_barrier
                    s_cmp_eq_u32 s37, {2*SLOT}
                    s_cselect_b32 s27, {(-2*SLOT) & 0xffffffff:#x}, s39
                    s_add_u32 s37, s37, s27
                    v_add_u32 v{AK1}, s27, v{AK1}
                    v_add_u32 v{AK2}, s27, v{AK2}
                    """)
                    for r in rdK1(0): p.I(r)
                else:
                    for r in rdK1(2 * U + 2): p.I(r)
            gap(1)
            if n == 3: p.I("s_waitcnt lgkmcnt(1)")
            p.I(QK2(Y, nx, npar))
            if n == 2:
                for r in rdK2(0 if lastU else U + 1): p.I(r)
                if lastU:
                    p.I(f"""
                    s_cmp_ge_u32 s26, {NCH-2}
                    s_cbranch_scc1 {name}_nodma
                    """)
                    dma("s25")
                    p.I(f"""
                    s_cmp_eq_u32 s25, {2*SLOT}
                    s_cselect_b32 s33, {(-2*SLOT) & 0xffffffff:#x}, s39
                    s_add_u32 s25, s25, s33
                    """)
                    p.L(f"{name}_nodma2")
            gap(2)
            if n in (1, 3): p.I("s_waitcnt lgkmcnt(0)")
            p.I(PV(1 - x, 1))
            if n in (0, 2):
                for r in rdV(VB, 2 * U + n // 2, 1): p.I(r)
            gap(3)
            if n in (0, 2): p.I(f"s_waitcnt lgkmcnt({2 if n == 0 else 3})")
            p.I(PV(x, 0))
            if n == 1:
                for r in rdV(VA, 2 * U + 1, 0): p.I(r)
            if n == 3:
                if lastU:
                    p.I(f"v_add_u32 v{AV}, s27, v{AV}")
                    for r in rdV(VA, 0, 0): p.I(r)
                else:
                    for r in rdV(VA, 2 * U + 2, 0): p.I(r)
        p.I(f"""
        s_add_u32 s26, s26, 1
        s_cmp_lt_u32 s26, {NCH}
        s_cbranch_scc1 {name}_loop
        """)
        Y = SX + 16
        for i in range(2): p.I(f"v_cvt_pk_bf16_f32 v{PP+6+i}, v{Y+12+2*i}, v{Y+13+2*i}")
        p.I(PV(1, 1))
    p.I("s_setprio 3")
    stamp(p, 2); cstamp(p, 6)
    R = SX + 16
    p.I(f"""
    s_add_u32 s33, s24, {SLOT}
    s_xor_b32 s34, s14, 4
    s_mul_i32 s34, s34, 3072
    s_add_u32 s34, s34, {SLOT}
    v_add_u32 v{T0+8}, s33, v{VOFF}
    v_add_u32 v{T0+9}, s34, v{VOFF}
    s_lshl_b32 s33, s16, 9
    v_add_u32 v{T0+2}, s33, v{T0+2}
    v_add_u32 v{T0+3}, s33, v{T0+3}
    s_lshl_b32 s34, s31, 15
    s_add_u32 s34, s34, {WS_O}
    s_add_u32 s35, s35, {WS_O}
    s_waitcnt lgkmcnt(0)
    s_barrier
    s_cmp_eq_u32 s16, 0
    s_cbranch_scc1 {name}_k0
    """)
    for kh in (1, 0):
        if kh == 0: p.L(f"{name}_k0")
        snd, own = OA + 16 * (1 - kh), OA + 16 * kh
        for i in range(3): p.I(f"ds_write_b128 v{T0+8}, {v(snd+4*i,4)} offset:{1024*i}")
        p.I("s_waitcnt lgkmcnt(0)")
        p.I("s_barrier")
        for i in (2, 0, 1): p.I(f"ds_read_b128 {v(R+4*i,4)}, v{T0+9} offset:{1024*i}")
        for n_, i in enumerate((2, 0, 1)):
            p.I(f"s_waitcnt lgkmcnt({2-n_})")
            for j in range(4): p.I(f"v_add_f32 v{R+4*i+j}, v{R+4*i+j}, v{own+4*i+j}")
        if kh == 1: p.I(f"s_branch {name}_fin")
    p.L(f"{name}_fin")
    p.I(f"""
    v_mov_b32 v{T0+10}, v{R+8}
    v_mov_b32 v{T0+11}, v{R+8}
    v_max3_f32 v{T0+12}, |v{R}|, |v{R+1}|, |v{R+2}|
    v_max3_f32 v{T0+13}, |v{R+3}|, |v{R+4}|, |v{R+5}|
    v_permlane32_swap_b32 v{T0+10}, v{T0+11}
    v_max3_f32 v{T0+14}, |v{R+6}|, |v{R+7}|, |v{R+8}|
    v_max3_f32 v{T0+15}, |v{R+9}|, |v{R+10}|, |v{R+11}|
    v_rcp_f32 v{T0+10}, v{T0+11}
    v_max3_f32 v{T0+12}, v{T0+12}, v{T0+13}, v{T0+14}
    v_max_f32 v{T0+12}, v{T0+12}, v{T0+15}
    s_mov_b32 s33, 0x1f800000
    s_mov_b32 s36, 0x5f800000
    s_mov_b32 s38, 0x7f000000
    v_cmp_le_f32 s[40:41], s33, v{T0+11}
    v_cmp_ge_f32 s[42:43], s36, v{T0+11}
    v_cmp_ge_f32 vcc, s38, v{T0+12}
    """)
    for i in range(12): p.I(f"v_mul_f32 v{R+i}, v{R+i}, v{T0+10}")
    p.I(f"""
    s_and_b64 s[40:41], s[40:41], s[42:43]
    s_and_b64 s[40:41], s[40:41], vcc
    s_cmp_eq_u64 s[40:41], -1
    s_cbranch_scc1 {name}_ok
    s_cmp_eq_u32 s26, 99
    s_cbranch_scc0 {name}_slow
    """)
    p.L(f"{name}_ok")
    for i in range(6): p.I(f"v_cvt_pk_bf16_f32 v{SX+i}, v{R+2*i}, v{R+2*i+1}")
    p.I(f"""
    buffer_store_dwordx4 {v(SX,4)}, v{T0+3}, {W}, s34 offen {"sc1" if tail else ""}
    s_mov_b32 exec_hi, 0
    buffer_store_dwordx2 {v(SX+4,2)}, v{T0+2}, {W}, s35 offen {"sc1" if tail else ""}
    """)
    stamp(p, 3)
    if tail: tail(p)
    else:
        stamp_flush(p, 9, WSRD, 14, kidx=kidx)
        p.I("s_endpgm")
    p.L(f"{name}_nodma")
    if late: late(p)
    p.I(f"s_branch {name}_nodma2")

    p.L(f"{name}_slow")
    GK1, GK2, GV, MX = T0+8, T0+9, T0+12, T0+13
    p.I(f"""
    v_lshlrev_b32 v{GK1}, 15, v{T0+1}
    v_lshl_add_u32 v{GK1}, v{T0}, 4, v{GK1}          ; h*32768 + key*16
    v_lshlrev_b32 v{GK2}, 4, v{T0}
    v_mul_u32_u24 v{GV}, 320, v{T0+1}
    v_lshl_add_u32 v{GV}, v{T0}, 4, v{GV}
    v_mov_b32 v{MX}, 0xff800000
    s_mov_b32 s27, 0                                 ; pass
    """)
    for i in range(16): p.I(f"v_mov_b32 v{OA+i}, 0")
    p.I(f"s_cmp_eq_u32 s16, 0"); p.I(f"s_cbranch_scc1 {name}_spass")
    for i in range(8): p.I(f"v_mov_b32 v{QF+i}, v{QF+8+i}")
    p.L(f"{name}_spass")
    p.I(f"""
    s_add_u32 s20, s31, 80
    s_lshl_b32 s20, s20, 15
    s_add_u32 s21, s30, 80
    s_lshl_b32 s21, s21, 15
    s_lshl_b32 s33, s29, 3
    s_add_u32 s21, s21, s33
    s_mul_i32 s22, s12, 81920
    s_add_u32 s22, s22, {WS_V}
    s_mov_b32 s26, 0
    """)
    p.L(f"{name}_sloop")
    p.I(f"""
    buffer_load_dwordx4 {v(K1,4)}, v{GK1}, {W}, s20 offen
    buffer_load_dwordx2 {v(K2,2)}, v{GK2}, {W}, s21 offen
    s_mov_b64 exec, s[18:19]
    buffer_load_dwordx4 {v(VA,4)}, v{GV}, {W}, s22 offen
    buffer_load_dwordx4 {v(VB,4)}, v{GV}, {W}, s22 offen offset:640
    s_mov_b64 exec, -1
    s_waitcnt vmcnt(0)
    """)
    p.I(QK1(SX, 0)); p.I(QK2(SX, 0, 0))
    p.I(f"""
    s_nop 7
    s_nop 7
    s_cmp_eq_u32 s27, 0
    s_cbranch_scc0 {name}_sp2
    """)
    for i in range(8): p.I(f"v_max3_f32 v{MX}, v{MX}, v{SX+2*i}, v{SX+2*i+1}")
    p.I(f"s_branch {name}_snext")
    p.L(f"{name}_sp2")
    for i in range(16): p.I(f"v_sub_f32 v{SX+i}, v{SX+i}, v{MX}")
    for i in range(16): p.I(f"v_exp_f32 v{SX+i}, v{SX+i}")
    for i in range(8): p.I(f"v_cvt_pk_bf16_f32 v{PP+i}, v{SX+2*i}, v{SX+2*i+1}")
    p.I(PV(0, 0)); p.I(PV(0, 1))
    p.L(f"{name}_snext")
    p.I(f"""
    s_add_u32 s20, s20, 512
    s_add_u32 s21, s21, 512
    s_add_u32 s22, s22, 1280
    s_add_u32 s26, s26, 1
    s_nop 7
    s_cmp_lt_u32 s26, 64
    s_cbranch_scc1 {name}_sloop
    s_cmp_eq_u32 s27, 1
    s_cbranch_scc1 {name}_sdone
    v_mov_b32 v{T0+14}, v{MX}
    v_mov_b32 v{T0+15}, v{MX}
    v_permlane32_swap_b32 v{T0+14}, v{T0+15}
    v_max3_f32 v{MX}, v{MX}, v{T0+14}, v{T0+15}
    s_mov_b32 s27, 1
    s_branch {name}_spass
    """)
    p.L(f"{name}_sdone")
    p.I(f"""
    s_mov_b32 s26, 99
    s_nop 7
    s_nop 3
    """)
    for i in range(12): p.I(f"v_mov_b32 v{SX+16+i}, v{OA+i}")
    p.I(f"s_branch {name}_fin")

def gen_k2(p, name="attn_kernel"):
    p.R(f".p2align 8\n.type {name},@function")
    p.L(name)
    stamp(p, 0)
    p.I(f"""
    s_load_dwordx2 s[4:5], s[0:1], {KA['ws']}
    s_cmp_ge_u32 s2, 256
    s_cbranch_scc1 {name}_exit
    v_lshrrev_b32 v1, 6, v0
    v_and_b32 v2, 63, v0
    v_readfirstlane_b32 s14, v1
    s_waitcnt lgkmcnt(0)
    """)
    srd(p, 8, 4, WS_SIZE)
    attn_body(p, name)
    p.L(f"{name}_exit")
    p.I("s_endpgm")
    return dict(name=name, grid=256, block=512, lds=3*SLOT, vgpr=128)
```

```python
from engine import *
from k2_bu import cmul, cfma, kc_loader_voff, LOG2E, INV2PI
import k2_attn

WS_E = 0xA80000
WS_F1 = 0xB00000
WS_EP = 0xBF0000
FAST = int(os.environ.get('FAST', '1'))
HASQ = 68
QONLY = int(os.environ.get('QONLY', '0'))
BD = int(os.environ.get("BD", "0"))
PFA = int(os.environ.get("PFA", "1")); PFB = int(os.environ.get("PFB", "1"))
EQ = Engine(Opnd("kc", 128), Opnd("tr", 128), 10, NU=5, early=True, P0=int(os.environ.get("P0Q", "3")))
W = "s[8:11]"; DBG = "s[84:87]"; OUT = "s[92:95]"
TAG = 80
SPIN = 200000
GOIT = int(os.environ.get('GOIT', '7'))
YGATE = 0
YPF = 0
RS = int(os.environ.get('RS', '0'))
PATB = eval(os.environ.get('PATB', 'None')); PATY = eval(os.environ.get('PATY', 'None'))

EB = Engine(Opnd("kc", 128), Opnd("kc", 128), 10, NU=5, early=True, P0=int(os.environ.get("P0B", "3")), pat=PATB)
EY = Engine(Opnd("tb", 128), Opnd("kc", 128), 20, NU=5, early=True, P0=3, pat=PATY)
CPF = int(os.environ.get("CPF", "4"))

def put_flag(p, soff, vt):
    p.I(f"""
    v_mov_b32 v{vt}, 0
    v_mov_b32 v{vt+1}, s{TAG}
    s_mov_b64 exec, 1
    buffer_store_dword v{vt+1}, v{vt}, {W}, s{soff} offen sc1
    s_mov_b64 exec, -1
    """)

def count_in(p, vt):
    p.I(f"""
    v_mov_b32 v{vt}, 0
    v_mov_b32 v{vt+1}, 1
    s_mov_b64 exec, 1
    buffer_atomic_add v{vt+1}, v{vt}, {DBG}, 0 offen sc1
    s_mov_b64 exec, -1
    """)

QST = 1
def pf_qkv(p, name, sw, vt, vd):
    p.I(f"""
    v_lshlrev_b32 v{vt}, 7, v2
    s_mul_i32 s40, s2, 10240
    s_mul_i32 s41, s{sw}, 5120
    s_add_u32 s40, s40, s41
    s_mul_i32 s41, s2, 9600
    s_mul_i32 s42, s{sw}, 4480
    s_add_u32 s41, s41, s42
    s_sub_u32 s41, s41, 8960
    s_mov_b32 s38, {2048*640*2}
    s_cmp_ge_u32 s{sw}, 2
    s_cselect_b32 s36, s26, s24
    s_cselect_b32 s37, s27, s25
    s_cselect_b32 s38, {640*1920*2}, s38
    s_cselect_b32 s40, s41, s40
    s_and_b32 s37, s37, 0xffff
    s_mov_b32 s39, 0x00020000
    s_mov_b32 exec_hi, 0xff
    buffer_load_dword v{vd}, v{vt}, s[36:39], s40 offen
    s_mov_b64 exec, -1
    """)
def vpf_front(p):
    p.I(f"""
    s_lshl_b32 s34, s15, 3
    s_add_u32 s34, s34, {KA['Bre'] - 16}
    s_cmp_ge_u32 s15, 2
    s_cselect_b32 s34, s34, {KA['A_x']}
    s_load_dwordx2 s[36:37], s[0:1], s34
    v_lshlrev_b32 v16, 7, v2
    s_and_b32 s35, s2, 255
    s_mul_i32 s40, s35, 10240
    s_mul_i32 s41, s15, 5120
    s_add_u32 s40, s40, s41
    s_mul_i32 s41, s35, 3200
    s_mov_b32 s38, {2048*640*2}
    s_cmp_ge_u32 s15, 2
    s_cselect_b32 s38, {640*640*2}, s38
    s_cselect_b32 s40, s41, s40
    s_cselect_b32 s42, 0x1ffffff, -1
    s_cselect_b32 s43, 0, 0xff
    s_mov_b32 s39, 0x00020000
    s_waitcnt lgkmcnt(0)
    s_and_b32 s37, s37, 0xffff
    """)
    if BD: p.I(f"s_sleep {BD}")
    p.I(f"""
    s_mov_b64 exec, s[42:43]
    buffer_load_dword v17, v16, s[36:39], s40 offen
    s_mov_b64 exec, -1
    """)
def vpf_late(p):
    p.I(f"""
    s_cmp_eq_u32 s15, 0
    s_cbranch_scc1 vl_d
    s_lshl_b32 s34, s15, 3
    s_add_u32 s34, s34, {KA['Cre'] - 8}
    s_cmp_eq_u32 s15, 3
    s_cselect_b32 s34, {KA['wo']}, s34
    s_load_dwordx2 s[36:37], s[0:1], s34
    v_lshlrev_b32 v16, 7, v2
    s_and_b32 s35, s2, 255
    s_mul_i32 s40, s35, 5120
    s_mov_b32 s38, {640*640*2}
    s_mov_b32 s39, 0x00020000
    s_waitcnt lgkmcnt(0)
    s_and_b32 s37, s37, 0xffff
    s_mov_b32 exec_hi, 0xff
    buffer_load_dword v17, v16, s[36:39], s40 offen
    s_mov_b64 exec, -1
    s_waitcnt vmcnt(0)
    """)
    p.L("vl_d")

def qkv_loader(p):
    p.I(f"""
    s_load_dwordx4 s[24:27], s[0:1], {KA['B_x']}
    s_lshl_b32 s30, s12, 7
    s_lshl_b32 s31, s15, 5
    s_add_u32 s30, s30, s31
    s_mul_i32 s30, s30, 1280
    v_lshrrev_b32 v3, 3, v2
    v_mul_u32_u24 v3, 1280, v3
    v_add_u32 v3, s30, v3
    s_waitcnt lgkmcnt(0)
    """)
    if PFA == 1: pf_qkv(p, "pfa", 15, 16, 17)
    if PFB == 2: vpf_front(p)
    if int(os.environ.get("PFW", "0")): p.I("s_waitcnt vmcnt(0)")
    kc_loader_voff(p, 4, 3, 2, 8 * 1280, 12)
    p.I(f"""
    s_lshl_b32 s31, s15, 4
    s_mul_i32 s31, s31, 3840
    s_lshl_b32 s32, s13, 8
    s_add_u32 s31, s31, s32
    v_lshrrev_b32 v12, 4, v2
    v_mul_u32_u24 v3, 3840, v12
    v_add_u32 v3, s31, v3
    v_and_b32 v13, 15, v2
    v_lshlrev_b32 v14, 2, v12
    v_xor_b32 v13, v13, v14
    v_lshl_add_u32 v8, v13, 4, v3
    v_add_u32 v9, {15360-1024}, v8
    v_add_u32 v10, {2*(15360-1024)}, v8
    v_add_u32 v11, {3*(15360-1024)}, v8
    """)
    srd(p, 36, 24, 2048*640*2)
    srd(p, 40, 26, 640*1920*2)
    p.I(f"""
    s_add_u32 s6, s4, {WS_EP}
    s_addc_u32 s7, s5, 0
    s_load_dword s{TAG}, s[6:7], 0
    """)
    p.I("s_mov_b32 s34, s17")
    if os.environ.get("XR"): p.I("s_add_u32 s34, s34, s70")
    kmod(p, 34, 10)
    p.I(f"s_mul_i32 s35, s34, {64*3840}"); p.I("s_lshl_b32 s34, s34, 7")
    def issue(st, which, off):
        p.I(f"s_add_u32 m0, s33, {off}")
        for i in range(4):
            p.I(f"buffer_load_dwordx4 v{4+4*which+i}, s[{36+4*which}:{39+4*which}], s{34+which} offen offset:{i*1024} lds")
        kadv(p, 34 + which, 128 if which == 0 else 64*3840, 10)
    def hook():
        p.I("s_waitcnt lgkmcnt(0)"); p.I(f"s_add_u32 s{TAG}, s{TAG}, 1")
    EQ.loader(p, issue, hook=hook, stamps=4 if os.environ.get("LST") else False)
    if os.environ.get("LST"):
        srd(p, 8, 4, WS_SIZE); stamp_flush(p, 12, 8, 14, kidx=1, vt=20); p.I("s_mov_b64 exec, -1")

def qkv_consumer(p):
    E = EQ
    AD = 4; FR = 28; ACC = 60; FA = 16
    assert AD + E.naddr() <= FA and FR + 2 * E.fr_per <= ACC
    E.cons_setup(p, AD, 2, 28, 29, FR, 30)
    for i in range(64): p.I(f"v_mov_b32 v{ACC+i}, 0")
    T = FR
    p.I(f"""
    v_and_b32 v126, 31, v2
    v_lshrrev_b32 v127, 5, v2
    s_cmp_ge_u32 s13, 5
    s_cselect_b32 s30, 1, 0
    s_cmp_ge_u32 s13, 10
    s_addc_u32 s30, s30, 0           ; ty
    s_mul_i32 s31, s30, 5
    s_sub_u32 s31, s13, s31
    s_lshl_b32 s31, s31, 1
    s_add_u32 s31, s31, s29
    s_lshl_b32 s32, s31, 6
    s_mul_i32 s33, s32, 3277
    s_lshr_b32 s33, s33, 16
    s_add_u32 s32, s32, 63
    s_mul_i32 s32, s32, 3277
    s_lshr_b32 s32, s32, 16
    v_add_u32 v{T}, s33, v2
    v_mul_u32_u24 v{T+1}, 20, v{T}
    v_lshrrev_b32 v{T+1}, 6, v{T+1}
    v_sub_u32 v{T+1}, s31, v{T+1}    ; w
    v_mul_u32_u24 v{T+2}, {FST}, v{T}
    v_lshl_add_u32 v{T+2}, v{T+1}, 7, v{T+2}
    s_lshl_b32 s30, s30, 8
    s_lshl_b32 s34, s12, 3
    s_add_u32 s30, s30, s34
    s_lshl_b32 s34, s28, 2
    s_add_u32 s30, s30, s34
    s_add_u32 s30, s30, {WS_F1}
    v_add_u32 v{FA}, s30, v{T+2}
    v_cmp_ge_u32 s[74:75], s32, v{T}
    s_waitcnt lgkmcnt(0)
    s_add_u32 s{TAG}, s{TAG}, 1
    v_mov_b32 v{FA+1}, s{TAG}
    s_cmp_ge_u32 s13, 10
    s_cbranch_scc1 q_consV
    s_lshl_b32 s30, s13, 4
    s_lshl_b32 s31, s29, 3
    s_add_u32 s30, s30, s31
    s_lshl_b32 s30, s30, 15
    s_lshl_b32 s31, s12, 11
    s_add_u32 s30, s30, s31
    s_lshl_b32 s31, s28, 10
    s_add_u32 s30, s30, s31
    v_lshlrev_b32 v124, 15, v127
    v_lshl_add_u32 v124, v126, 4, v124
    v_add_u32 v124, s30, v124
    """)
    E.consumer(p, AD, FR, ACC, False, 34, "q_lqk")
    stamp(p, 1)
    n = 0
    for t in range(2):
        for ap in range(2):
            p.I(f"s_mov_b32 s{32+(n%2)}, {WS_QK + (4*t+2*ap)*32768}")
            for u in range(2):
                d = ACC + 32 * t + 16 * u + 8 * ap
                o = FR + 4 * ((2 * n + u) % 8)
                for j in range(4):
                    p.I(f"v_cvt_pk_bf16_f32 v{o+j}, v{d+2*j}, v{d+2*j+1}")
                p.I(f"buffer_store_dwordx4 {v(o,4)}, v124, {W}, s{32+(n%2)} offen offset:{u*512} sc1")
            n += 1
    p.I("s_branch q_pub")
    p.L("q_consV")
    p.I(f"""
    v_and_b32 v1, 19, v126
    v_bfe_u32 v0, v126, 2, 1
    v_bfe_u32 v3, v126, 3, 1
    v_lshl_add_u32 v1, v0, 3, v1
    v_lshl_add_u32 v1, v3, 2, v1
    s_sub_u32 s30, s13, 10
    s_lshl_b32 s30, s30, 7
    s_lshl_b32 s31, s29, 6
    s_add_u32 s30, s30, s31
    v_add_u32 v1, s30, v1
    s_lshl_b32 s31, s12, 2
    s_lshl_b32 s32, s28, 1
    s_add_u32 s31, s31, s32
    s_mul_i32 s31, s31, 1280
    s_add_u32 s31, s31, {WS_V}
    s_mov_b32 s35, 81920
    """)
    for t in range(2):
        p.I(f"""
        v_add_u32 v{T}, {32*t}, v1
        v_mul_u32_u24 v{T+1}, 3277, v{T}
        v_lshrrev_b32 v{T+1}, 16, v{T+1}
        v_mul_u32_u24 v{T+2}, 20, v{T+1}
        v_sub_u32 v{T+2}, v{T}, v{T+2}
        v_and_b32 v{T+3}, 1, v{T+1}
        v_lshlrev_b32 v{T+3}, 2, v{T+3}
        v_sub_u32 v{T+2}, v{T+2}, v{T+3}
        v_add_u32 v{T+4}, 20, v{T+2}
        v_cmp_gt_i32 vcc, 0, v{T+2}
        v_cndmask_b32 v{T+2}, v{T+2}, v{T+4}, vcc
        v_and_b32 v{T+4}, 3, v{T+2}
        v_bfe_u32 v{T+5}, v{T+2}, 2, 1
        v_bfe_u32 v{T+6}, v{T+2}, 3, 1
        v_lshl_add_u32 v{T+4}, v{T+5}, 3, v{T+4}
        v_lshl_add_u32 v{T+4}, v{T+6}, 2, v{T+4}
        v_cmp_gt_u32 vcc, 16, v{T+2}
        v_cndmask_b32 v{T+2}, v{T+2}, v{T+4}, vcc
        v_mul_lo_u32 v{T+1}, v{T+1}, s35
        v_lshl_add_u32 v{T+1}, v{T+2}, 4, v{T+1}
        v_mul_u32_u24 v{T+3}, 320, v127
        v_add3_u32 v{124+t}, v{T+1}, v{T+3}, s31
        """)
    E.consumer(p, AD, FR, ACC, True, 34, "q_lv")
    stamp(p, 1)
    n = 0
    for t in range(2):
        for u in range(2):
            for aa in range(2):
                d = ACC + 32 * t + 16 * u + 8 * aa
                o = FR + 4 * (n % 8)
                for j in range(4):
                    p.I(f"v_cvt_pk_bf16_f32 v{o+j}, v{d+2*j}, v{d+2*j+1}")
                p.I(f"buffer_store_dwordx4 {v(o,4)}, v{124+t}, {W}, 0 offen offset:{u*1280+aa*640} sc1")
                n += 1
    p.L("q_pub")
    if FAST: p.I("s_mov_b32 s81, 1")
    else: q_publish(p)

def q_publish(p):
    p.I(f"""
    s_waitcnt vmcnt(0)
    s_mov_b64 exec, s[74:75]
    buffer_store_dword v17, v16, {W}, 0 offen sc1
    s_mov_b64 exec, -1
    """)
    stamp(p, 10)

def tile20(p, sj):
    p.I(f"""
    s_and_b32 s12, s70, 3
    s_lshl_b32 s12, s12, 2
    s_and_b32 s13, s{sj}, 3
    s_add_u32 s12, s12, s13
    s_lshr_b32 s13, s70, 2
    s_mul_i32 s13, s13, 5
    s_lshr_b32 s31, s{sj}, 2
    s_add_u32 s13, s13, s31
    """)

def bu_loader(p, hook):
    p.I(f"""
    s_load_dwordx2 s[16:17], s[0:1], {KA['A_x']}
    s_load_dwordx4 s[20:23], s[0:1], {KA['Bre']}
    s_sub_u32 s30, s71, 12
    """)
    tile20(p, 30)
    p.I(f"""
    s_lshr_b32 s30, s15, 1
    s_and_b32 s31, s15, 1
    s_lshl_b32 s34, s12, 7
    s_lshl_b32 s35, s30, 6
    s_add_u32 s34, s34, s35
    s_lshl_b32 s35, s31, 4
    s_add_u32 s34, s34, s35
    s_mul_i32 s34, s34, 1280
    v_lshrrev_b32 v3, 5, v2
    v_bfe_u32 v12, v2, 3, 2
    v_lshl_add_u32 v3, v3, 5, v12
    v_mul_u32_u24 v3, 1280, v3
    v_add_u32 v3, s34, v3
    """)
    kc_loader_voff(p, 4, 3, 2, 4 * 1280, 12)
    p.I(f"""
    s_lshl_b32 s34, s13, 6
    s_lshl_b32 s35, s30, 5
    s_add_u32 s34, s34, s35
    s_mul_i32 s34, s34, 1280
    v_lshrrev_b32 v3, 3, v2
    v_mul_u32_u24 v3, 1280, v3
    v_add_u32 v3, s34, v3
    """)
    kc_loader_voff(p, 8, 3, 2, 8 * 1280, 12)
    p.I(f"""
    s_waitcnt lgkmcnt(0)
    s_cmp_eq_u32 s31, 0
    s_cselect_b32 s18, s20, s22
    s_cselect_b32 s19, s21, s23
    """)
    srd(p, 36, 16, 2048*640*2)
    srd(p, 40, 18, 640*640*2)
    p.I(f"""
    s_sub_u32 s30, s71, 12
    s_and_b32 s34, s30, 3
    s_mul_i32 s34, s34, 5
    s_add_u32 s34, s34, 1
    s_lshr_b32 s34, s34, 1
    s_lshr_b32 s35, s30, 2
    s_lshl_b32 s35, s35, 1
    s_add_u32 s34, s34, s35
    """)
    if os.environ.get("XR"): p.I("s_add_u32 s34, s34, s70")
    kmod(p, 34, 10)
    p.I("s_lshl_b32 s34, s34, 7"); p.I("s_mov_b32 s35, s34")
    def issue(st, which, off):
        p.I(f"s_add_u32 m0, s33, {off}")
        for i in range(4):
            p.I(f"buffer_load_dwordx4 v{4+4*which+i}, s[{36+4*which}:{39+4*which}], s{34+which} offen offset:{i*1024} lds")
        kadv(p, 34 + which, 128, 10)
    def gload(st, which, i, vd):
        if i == 0: p.I(f"s_movk_i32 s32, {st*128}")
        p.I(f"buffer_load_dwordx4 {v(vd,4)}, v{4+4*which+i}, s[{36+4*which}:{39+4*which}], s32 offen offset:{i*1024}")
    if RS:
        EB.rs_setup(p, 12, 2, 15)
        EB.loader_rs(p, gload, 12, 16, 28)
    else: EB.loader(p, issue, hook=hook, stamps=4 if os.environ.get("LST") else False)
    if os.environ.get("LST"):
        srd(p, 8, 4, WS_SIZE); stamp_flush(p, 12, 8, 14, kidx=1, vt=20)

def bu_consumer(p, mid):
    E = EB; name = "b"
    AD = 4; FR = 20; ACC = 52; CO = 116
    assert AD + E.naddr() <= FR and FR + 2 * E.fr_per <= ACC
    LA, LB, CR, CI, L32R, L32I, L64R, L64I, VP, VH = range(CO, CO + 10)
    T = FR
    p.I(f"""
    s_load_dwordx4 s[24:27], s[0:1], {KA['Lre']}
    s_load_dwordx2 s[16:17], s[0:1], {KA['logdt']}
    s_sub_u32 s30, s71, 12
    """)
    tile20(p, 30)
    p.I(f"""
    s_lshl_b32 s34, s13, 6
    s_lshl_b32 s35, s29, 5
    s_add_u32 s34, s34, s35
    v_and_b32 v{VP}, 31, v2
    v_add_u32 v{VP}, s34, v{VP}
    v_lshrrev_b32 v{VH}, 5, v2
    v_lshlrev_b32 v{T+8}, 1, v{VP}
    s_waitcnt lgkmcnt(0)
    global_load_ushort v{CO}, v{T+8}, s[24:25]
    global_load_ushort v{CO+1}, v{T+8}, s[26:27]
    global_load_ushort v{CO+2}, v{T+8}, s[16:17]
    """)
    mid()
    E.cons_setup(p, AD, 2, 28, 29, T, 32)
    for i in range(64): p.I(f"v_mov_b32 v{ACC+i}, 0")
    def coefs():
        lre, lim, dt = T + 9, T + 10, T + 11
        p.I(f"""
        s_mov_b32 s32, {LOG2E:#x}
        s_mov_b32 s33, {INV2PI:#x}
        s_waitcnt vmcnt(0)
        v_lshlrev_b32 v{lre}, 16, v{CO}
        v_lshlrev_b32 v{lim}, 16, v{CO+1}
        v_lshlrev_b32 v{dt}, 16, v{CO+2}
        v_mul_f32 v{dt}, s32, v{dt}
        v_exp_f32 v{dt}, v{dt}
        v_cvt_pk_bf16_f32 v{dt}, v{dt}, v{dt}
        v_lshlrev_b32 v{dt}, 16, v{dt}
        v_mul_f32 v{T}, v{dt}, v{lre}
        v_mul_f32 v{T+1}, v{dt}, v{lim}
        v_mul_f32 v{T}, s32, v{T}
        v_mul_f32 v{T+1}, s33, v{T+1}
        v_exp_f32 v{T}, v{T}
        v_fract_f32 v{T+1}, v{T+1}
        v_cos_f32 v{T+2}, v{T+1}
        v_sin_f32 v{T+3}, v{T+1}
        v_mul_f32 v{LA}, v{T}, v{T+2}
        v_mul_f32 v{LB}, v{T}, v{T+3}
        v_add_f32 v{T+4}, -1.0, v{LA}
        v_mul_f32 v{T+5}, v{lre}, v{lre}
        v_fma_f32 v{T+5}, v{lim}, v{lim}, v{T+5}
        v_rcp_f32 v{T+5}, v{T+5}
        v_mul_f32 v{CR}, v{T+4}, v{lre}
        v_add_f32 v{T+5}, v{T+5}, v{T+5}
        v_fma_f32 v{CR}, v{LB}, v{lim}, v{CR}
        v_mul_f32 v{CI}, v{LB}, v{lre}
        v_fma_f32 v{CI}, -v{T+4}, v{lim}, v{CI}
        v_mul_f32 v{CR}, v{CR}, v{T+5}
        v_mul_f32 v{CI}, v{CI}, v{T+5}
        """)
        cmul(p, L32R, L32I, LA, LB, LA, LB, T)
        for _ in range(4): cmul(p, L32R, L32I, L32R, L32I, L32R, L32I, T)
        cmul(p, L64R, L64I, L32R, L32I, L32R, L32I, T)
    if not os.environ.get('CLATE'): coefs()
    p.I("s_waitcnt lgkmcnt(0)"); p.I(f"s_add_u32 s{TAG}, s{TAG}, 1")
    p.I(f"s_setprio {PATB[-1] if PATB else 0}")
    E.consumer(p, AD, FR, ACC, True, 32, f"{name}_loop")
    p.I("s_cmp_lg_u32 s14, 0"); p.I("s_cbranch_scc1 b_nc")
    count_in(p, 126)
    p.L("b_nc")
    p.I("s_setprio 3")
    stamp(p, 3)
    if os.environ.get('CLATE'): coefs()
    p.I("s_nop 7")
    RE = lambda s: ACC + s
    IM = lambda s: ACC + 32 + s
    ELR, ELI = 6, 7
    er, ei, nr, ni = RE(0), IM(0), 8, 9
    for s_ in range(1, 32):
        p.I(f"""
        v_fma_f32 v{nr}, v{LA}, v{er}, v{RE(s_)}
        v_fma_f32 v{ni}, v{LA}, v{ei}, v{IM(s_)}
        v_fma_f32 v{nr}, -v{LB}, v{ei}, v{nr}
        v_fma_f32 v{ni}, v{LB}, v{er}, v{ni}
        """)
        er, ei, nr, ni = (nr, ni, 4, 5) if s_ == 1 else (nr, ni, er, ei)
    p.I(f"""
    v_mov_b32 v{ELR}, v{er}
    v_mov_b32 v{ELI}, v{ei}
    v_mov_b32 v10, v{er}
    v_mov_b32 v11, v{ei}
    v_permlane32_swap_b32 v{ELR}, v10
    v_permlane32_swap_b32 v{ELI}, v11
    """)
    cfma(p, 12, 14, L32R, L32I, ELR, ELI, 10, 11, 16)
    p.I(f"""
    v_mov_b32 v13, s{TAG}
    v_mov_b32 v15, s{TAG}
    s_lshl_b32 s34, s12, 1
    s_add_u32 s34, s34, s28          ; cidx
    s_mul_i32 s35, s34, 10240
    s_add_u32 s36, s35, {WS_E}
    s_add_u32 s35, s35, {WS_E - 32*10240}
    v_lshlrev_b32 v16, 4, v{VP}
    s_mov_b32 exec_hi, 0
    buffer_store_dwordx4 v[12:15], v16, {W}, s36 offen sc1
    s_mov_b64 exec, -1
    v_mul_u32_u24 v17, {16*10240}, v{VH}
    v_add_u32 v17, v17, v16
    """)
    G = FR
    def preset():
        for k in range(8):
            p.I(f"v_mov_b32 v{G+4*k}, 0"); p.I(f"v_mov_b32 v{G+4*k+1}, s{TAG}")
            p.I(f"v_mov_b32 v{G+4*k+2}, 0"); p.I(f"v_mov_b32 v{G+4*k+3}, s{TAG}")
    def gather(b):
        for k in range(8):
            kk = 8 * b + k
            L = p.newlabel("g")
            p.I(f"""
            s_cmp_lt_u32 s34, {16-kk}
            s_cbranch_scc1 {L}
            s_cmp_ge_u32 s34, {32-kk}
            s_cselect_b32 exec_lo, -1, 0
            s_add_u32 s36, s35, {kk*10240}
            buffer_load_dwordx4 {v(G+4*k,4)}, v17, {W}, s36 offen sc1
            """)
            p.L(L)
        p.I("s_mov_b64 exec, -1")
    def check(b):
        lbl = f"{name}_poll{b}"
        p.I("s_mov_b32 s37, 0")
        p.L(lbl)
        p.I("s_waitcnt vmcnt(0)")
        for k in range(8):
            p.I(f"v_xor_b32 v12, s{TAG}, v{G+4*k+1}")
            p.I(f"v_xor_b32 v13, s{TAG}, v{G+4*k+3}")
            p.I(f"v_or_b32 v14, v12, v13" if k == 0 else f"v_or3_b32 v14, v14, v12, v13")
        p.I(f"""
        v_cmp_ne_u32 vcc, 0, v14
        s_cmp_eq_u64 vcc, 0
        s_cbranch_scc1 {lbl}_ok
        s_add_u32 s37, s37, 1
        s_cmp_gt_u32 s37, {SPIN}
        s_cbranch_scc1 {lbl}_ok
        s_sleep 6
        """)
        gather(b)
        p.I(f"s_branch {lbl}")
        p.L(lbl + "_ok")
    preset()
    for s_ in range(32):
        p.I(f"""
        v_mul_f32 v{18+(s_&1)}, v{CI}, v{RE(s_)}
        v_mul_f32 v{RE(s_)}, v{CR}, v{RE(s_)}
        v_fma_f32 v{RE(s_)}, -v{CI}, v{IM(s_)}, v{RE(s_)}
        v_fma_f32 v{IM(s_)}, v{CR}, v{IM(s_)}, v{18+(s_&1)}
        """)
        if s_ == 8: gather(0)
    cmul(p, 8, 9, L64R, L64I, L64R, L64I, 14)
    for _ in range(3): cmul(p, 8, 9, 8, 9, 8, 9, 14)
    hr, hi, nr, ni = None, None, 10, 11
    for b in range(2):
        check(b)
        for k in range(8):
            if hr is None:
                p.I(f"v_mov_b32 v4, v{G}"); p.I(f"v_mov_b32 v5, v{G+2}"); hr, hi = 4, 5; continue
            p.I(f"""
            v_fma_f32 v{nr}, v{L64R}, v{hr}, v{G+4*k}
            v_fma_f32 v{ni}, v{L64R}, v{hi}, v{G+4*k+2}
            v_fma_f32 v{nr}, -v{L64I}, v{hi}, v{nr}
            v_fma_f32 v{ni}, v{L64I}, v{hr}, v{ni}
            """)
            hr, hi, nr, ni = nr, ni, hr, hi
        if b == 0: gather(1)
    stamp(p, 4)
    p.I(f"""
    v_mov_b32 v16, v{hr}
    v_mov_b32 v17, v{hi}
    v_mov_b32 v18, v{hr}
    v_mov_b32 v19, v{hi}
    v_permlane32_swap_b32 v16, v18
    v_permlane32_swap_b32 v17, v19
    """)
    cfma(p, 10, 11, 8, 9, 16, 17, 18, 19, 14)
    cfma(p, 12, 13, L32R, L32I, 10, 11, ELR, ELI, 14)
    p.I(f"""
    v_cmp_eq_u32 vcc, 0, v{VH}
    v_cndmask_b32 v10, v12, v10, vcc
    v_cndmask_b32 v11, v13, v11, vcc
    """)
    cmul(p, 10, 11, 10, 11, CR, CI, 14)
    p.I(f"""
    s_lshl_b32 s35, s34, 3
    s_mul_i32 s35, s35, {HS}
    s_add_u32 s35, s35, {WS_H}
    v_mul_u32_u24 v16, {4*HS}, v{VH}
    v_lshl_add_u32 v16, v{VP}, 4, v16
    """)
    pr, pi = 10, 11
    for q in range(4):
        for s_ in range(8 * q, 8 * q + 8):
            p.I(f"""
            v_fma_f32 v{RE(s_)}, v{LA}, v{pr}, v{RE(s_)}
            v_fma_f32 v{IM(s_)}, v{LA}, v{pi}, v{IM(s_)}
            v_fma_f32 v{RE(s_)}, -v{LB}, v{pi}, v{RE(s_)}
            v_fma_f32 v{IM(s_)}, v{LB}, v{pr}, v{IM(s_)}
            """)
            pr, pi = RE(s_), IM(s_)
        o = FR + 8 * q
        for j in range(4):
            p.I(f"v_cvt_pk_bf16_f32 v{o+j}, v{RE(8*q+2*j)}, v{RE(8*q+2*j+1)}")
            p.I(f"v_cvt_pk_bf16_f32 v{o+4+j}, -v{IM(8*q+2*j)}, -v{IM(8*q+2*j+1)}")
        p.I(f"buffer_store_dwordx4 {v(o,4)}, v16, {W}, s35 offen sc1")
        p.I(f"s_add_u32 s35, s35, 10240")
        p.I(f"buffer_store_dwordx4 {v(o+4,4)}, v16, {W}, s35 offen sc1")
        p.I(f"s_add_u32 s35, s35, {HS-10240}")
    p.I(f"""
    s_mul_i32 s30, s12, {FST}
    s_lshl_b32 s31, s13, 4
    s_add_u32 s30, s30, s31
    s_lshl_b32 s31, s14, 2
    s_add_u32 s30, s30, s31
    s_add_u32 s30, s30, {WS_F2}
    s_waitcnt vmcnt(0)
    """)
    put_flag(p, 30, 4)
    stamp(p, 5)

def poll_flags(p, soff, nlanes, vt, st, wide=False, sleep=4, addr=None):
    L = p.newlabel("pf")
    if addr is None: p.I(f"v_lshlrev_b32 v{vt}, {4 if wide else 2}, v2")
    va = vt if addr is None else addr
    p.I(f"s_mov_b32 s{st}, 0")
    if nlanes:
        p.I(f"s_mov_b64 s[40:41], {(1 << nlanes) - 1 if nlanes < 31 else -1}")
        if 32 <= nlanes < 64: p.I(f"s_mov_b32 s41, {(1 << (nlanes - 32)) - 1:#x}")
    p.L(L)
    if wide:
        p.I(f"""
        buffer_load_dwordx4 {v(vt+2,4)}, v{va}, {W}, s{soff} offen sc1
        s_add_u32 s{st}, s{st}, 1
        s_waitcnt vmcnt(0)
        v_xor_b32 v{vt+2}, s{TAG}, v{vt+2}
        v_xor_b32 v{vt+3}, s{TAG}, v{vt+3}
        v_xor_b32 v{vt+4}, s{TAG}, v{vt+4}
        v_xor_b32 v{vt+5}, s{TAG}, v{vt+5}
        v_or3_b32 v{vt+2}, v{vt+2}, v{vt+3}, v{vt+4}
        v_or_b32 v{vt+2}, v{vt+2}, v{vt+5}
        v_cmp_ne_u32 vcc, 0, v{vt+2}
        """)
    else:
        p.I(f"""
        buffer_load_dword v{vt+2}, v{vt}, {W}, s{soff} offen sc1
        s_add_u32 s{st}, s{st}, 1
        s_waitcnt vmcnt(0)
        v_cmp_ne_u32 vcc, s{TAG}, v{vt+2}
        """)
    p.I(f"""
    s_and_b64 vcc, vcc, s[40:41]
    s_cbranch_scc0 {L}_d
    s_sleep {sleep}
    s_cmp_lt_u32 s{st}, {SPIN}
    s_cbranch_scc1 {L}
    """)
    p.L(L + "_d")

def ytile(p):
    p.I(f"""
    s_lshl_b32 s12, s70, 1
    s_and_b32 s13, s71, 1
    s_add_u32 s12, s12, s13
    s_lshr_b32 s13, s71, 1
    """)

YRS = 528
def y_final_setup(p, XA):
    p.I(f"""
    s_load_dwordx2 s[24:25], s[0:1], {KA['A_x']}
    s_load_dwordx2 s[26:27], s[0:1], {KA['Dskip']}
    v_lshrrev_b32 v{XA+4}, 5, v2
    v_and_b32 v{XA+5}, 31, v2
    s_lshl_b32 s34, s14, 4
    v_add_u32 v{XA+4}, s34, v{XA+4}
    v_mul_u32_u24 v{XA}, {YRS}, v{XA+4}
    v_lshl_add_u32 v{XA}, v{XA+5}, 4, v{XA}
    s_lshl_b32 s34, s12, 7
    v_add_u32 v{XA+4}, s34, v{XA+4}               ; t
    s_lshl_b32 s35, s13, 8
    v_lshl_add_u32 v{XA+3}, v{XA+5}, 3, s35
    v_mul_u32_u24 v{XA+1}, 1280, v{XA+4}
    v_add_u32 v{XA+1}, v{XA+1}, v{XA+3}
    v_mul_u32_u24 v{XA+2}, 5120, v{XA+4}
    v_lshl_add_u32 v{XA+2}, v{XA+3}, 1, v{XA+2}
    s_waitcnt lgkmcnt(0)
    global_load_dwordx2 {v(XA+8,2)}, v{XA+3}, s[26:27]
    """)
    srd(p, 76, 24, 2048*640*2)
    p.I(f"""
    s_waitcnt vmcnt(0)
    v_lshlrev_b32 v{XA+4}, 16, v{XA+8}
    v_and_b32 v{XA+5}, 0xffff0000, v{XA+8}
    v_lshlrev_b32 v{XA+6}, 16, v{XA+9}
    v_and_b32 v{XA+7}, 0xffff0000, v{XA+9}
    """)
def y_xload(p, XA, XR):
    for i in range(8):
        p.I(f"buffer_load_dwordx2 {v(XR+2*i,2)}, v{XA+1}, s[76:79], 0 offen" if i == 0 else f"buffer_load_dwordx2 {v(XR+2*i,2)}, v{XA+1}, s[76:79], s33 offen")
        if i < 7: p.I(f"s_mov_b32 s33, {(i+1)*2560}")
def y_final(p, XA, XR, D, t):
    p.I("s_barrier")
    for i in range(8):
        p.I(f"ds_read_b128 {v(D+4*i,4)}, v{XA} offset:{2*i*YRS}")
    p.I("s_mov_b32 s33, 0")
    for i in range(8):
        p.I(f"s_waitcnt vmcnt(7) lgkmcnt({7-i})")
        for j in range(2):
            p.I(f"v_lshlrev_b32 v{t}, 16, v{XR+2*i+j}")
            p.I(f"v_and_b32 v{t+1}, 0xffff0000, v{XR+2*i+j}")
            p.I(f"v_fmac_f32 v{D+4*i+2*j}, v{t}, v{XA+4+2*j}")
            p.I(f"v_fmac_f32 v{D+4*i+2*j+1}, v{t+1}, v{XA+5+2*j}")
        p.I(f"buffer_store_dwordx4 {v(D+4*i,4)}, v{XA+2}, {OUT}, s33 offen {os.environ.get('YST', 'sc1 nt')}")
        if i < 7: p.I(f"s_add_u32 s33, s33, {2*5120}")

def y_loader(p):
    ytile(p)
    y_final_setup(p, 116)
    p.I(f"s_load_dwordx4 s[20:23], s[0:1], {KA['Cre']}")
    p.I(f"""
    s_lshl_b32 s34, s12, 4
    s_lshl_b32 s35, s15, 2
    s_add_u32 s34, s34, s35
    s_mul_i32 s34, s34, {HS}
    s_add_u32 s34, s34, {WS_H}
    """)
    for i in range(4):
        p.I(f"v_xor_b32 v3, {i<<2}, v2")
        p.I(f"v_lshl_add_u32 v{4+i}, v3, 4, s34")
        if i: p.I(f"v_add_u32 v{4+i}, {i*(HS-1024)}, v{4+i}")
    p.I(f"""
    s_lshl_b32 s34, s13, 7
    s_lshl_b32 s35, s15, 5
    s_add_u32 s34, s34, s35
    s_mul_i32 s34, s34, 1280
    v_lshrrev_b32 v3, 5, v2
    v_bfe_u32 v12, v2, 3, 2
    v_lshl_add_u32 v3, v3, 4, v12
    v_mul_u32_u24 v3, 1280, v3
    v_add_u32 v3, s34, v3
    """)
    kc_loader_voff(p, 8, 3, 2, 4 * 1280, 12)
    p.I("s_waitcnt lgkmcnt(0)")
    srd(p, 36, 20, 640*640*2)
    srd(p, 24, 22, 640*640*2)
    p.I("s_mov_b32 s42, s38"); p.I("s_mov_b32 s43, 0x00020000")
    if CPF:
        p.I(f"""
        s_cmp_eq_u32 s15, 0
        s_cbranch_scc1 y_poll
        s_and_b32 s35, s71, 1
        s_cmp_eq_u32 s35, 0
        s_cselect_b32 s40, s36, s24
        s_cselect_b32 s41, s37, s25
        v_lshlrev_b32 v16, 7, v2
        v_mov_b32 v18, 0
        s_mul_i32 s34, s13, {128*1280}
        s_sub_u32 s35, s15, 1
        s_mul_i32 s35, s35, {13*4096}
        s_add_u32 s34, s34, s35
        """)
        for i in range(7):
            p.I(f"buffer_load_dword v17, v16, s[40:43], s34 offen")
            p.I(f"s_add_u32 s34, s34, 8192")
            p.I("s_waitcnt vmcnt(0)")
            if i < 6:
                p.I(f"s_sleep {CPF}")
                p.I(f"""
                ds_read_b32 v19, v18
                s_waitcnt lgkmcnt(0)
                v_readfirstlane_b32 s35, v19
                s_cmp_lg_u32 s35, 0
                s_cbranch_scc1 y_poll
                """)
        p.L("y_poll")
    p.I("s_cmp_lg_u32 s15, 0"); p.I("s_cbranch_scc1 y_nopoll")
    p.I(f"s_mul_i32 s34, s12, {FST}"); p.I(f"s_add_u32 s34, s34, {WS_F2}")
    poll_flags(p, 34, 10, 16, 30, wide=True, sleep=6)
    p.I(f"""
    v_mov_b32 v18, 0
    v_mov_b32 v19, 1
    ds_write_b32 v18, v19
    s_waitcnt lgkmcnt(0)
    """)
    p.L("y_nopoll")
    p.I("s_barrier")
    p.I(f"""
    s_and_b32 s18, s71, 1
    s_mul_i32 s18, s18, 10
    s_lshl_b32 s19, s13, 2
    s_add_u32 s18, s18, s19
    """)
    kmod(p, 18, 20)
    p.I("s_lshl_b32 s19, s18, 7"); p.I("s_lshl_b32 s18, s18, 10")
    def issue(st, which, off):
        p.I(f"s_add_u32 m0, s33, {off}")
        if which == 0:
            for i in range(4):
                p.I(f"buffer_load_dwordx4 v{4+i}, {W}, s18 offen offset:{i*1024} lds")
            kadv(p, 18, 1024, 20)
        else:
            p.I(f"""
            s_cmp_ge_u32 s19, 1280
            s_cselect_b32 s40, s24, s36
            s_cselect_b32 s41, s25, s37
            s_cselect_b32 s32, 1280, 0
            s_sub_u32 s32, s19, s32
            """)
            for i in range(4):
                p.I(f"buffer_load_dwordx4 v{8+i}, s[40:43], s32 offen offset:{i*1024} lds")
            kadv(p, 19, 128, 20)
    EY.loader(p, issue)
    y_xload(p, 116, 20)
    y_final(p, 116, 20, 52, 5)

def y_consumer(p):
    E = EY
    AD = 4; FR = 20; ACC = 52; XA = 116
    assert AD + E.naddr() <= FR and FR + E.NB * E.fr_per <= ACC
    ytile(p)
    y_final_setup(p, XA)
    E.cons_setup(p, AD, 2, 28, 29, FR, 32)
    for i in range(64): p.I(f"v_mov_b32 v{ACC+i}, 0")
    p.I(f"""
    s_mul_i32 s32, s28, {64*YRS}
    s_lshl_b32 s33, s29, 8
    s_add_u32 s32, s32, s33
    v_and_b32 v126, 31, v2
    v_lshrrev_b32 v127, 5, v2
    v_mul_u32_u24 v126, {YRS}, v126
    v_lshl_add_u32 v126, v127, 6, v126
    v_add_u32 v126, s32, v126
    """)
    p.I(f"s_setprio {PATY[-1] if PATY else 0}")
    p.I("s_barrier")
    stamp(p, 6)
    if DIAG: p.I("s_waitcnt lgkmcnt(0)")
    E.consumer(p, AD, FR, ACC, False, 32, "y_loop")
    p.I("s_setprio 3")
    stamp(p, 7)
    y_xload(p, XA, FR)
    for t in range(2):
        for u in range(2):
            for q in range(4):
                p.I(f"ds_write_b128 v126, {v(ACC+32*t+16*u+4*q,4)} offset:{u*32*YRS+t*128+16*q}")
    p.I("s_waitcnt lgkmcnt(0)")
    y_final(p, XA, FR, ACC, 5)
    if DIAG: p.I("s_waitcnt vmcnt(0)")
    stamp(p, 8)

WOV = 98
def wo_setup(p):
    p.I(f"""
    s_load_dwordx2 s[82:83], s[0:1], {KA['wo']}
    v_lshrrev_b32 v{WOV}, 3, v2
    v_mul_u32_u24 v{WOV}, 1280, v{WOV}
    v_and_b32 v{WOV+1}, 7, v2
    v_bfe_u32 v3, v2, 4, 1
    v_lshlrev_b32 v3, 2, v3
    v_xor_b32 v{WOV+1}, v{WOV+1}, v3
    v_lshl_add_u32 v{WOV}, v{WOV+1}, 4, v{WOV}
    s_and_b32 s73, s14, 1
    s_lshl_b32 s73, s73, 5
    v_xor_b32 v{WOV}, s73, v{WOV}
    v_xor_b32 v{WOV+1}, 32, v{WOV}
    s_sub_u32 s73, s71, 12
    s_lshr_b32 s73, s73, 1
    s_lshl_b32 s73, s73, 7
    s_waitcnt lgkmcnt(0)
    """)
    srd(p, 76, 82, 640*640*2)
def wo_part(p, slot):
    p.I(f"s_mul_i32 s33, s14, {24*1280}")
    p.I(f"s_add_u32 s33, s33, s73")
    for i in range(3):
        p.I(f"s_add_u32 m0, s24, {slot*24576+i*1024}")
        p.I(f"s_add_u32 s81, s33, {(192*slot+8*i)*1280}")
        p.I(f"buffer_load_dwordx4 v{WOV+(i&1)}, s[76:79], s81 offen lds")
def att_late(p):
    p.I(f"""
    s_cmp_lt_u32 s71, 12
    s_cbranch_scc1 a_nodma2
    s_cmp_eq_u32 s26, 7
    s_cbranch_scc1 a_l2
    """)
    wo_part(p, 2)
    p.I(f"""
    s_lshl_b32 s33, s14, 10
    s_add_u32 m0, s33, {3*24576}
    s_mul_i32 s33, s14, {8*1280}
    s_add_u32 s33, s33, s73
    s_add_u32 s33, s33, {576*1280}
    buffer_load_dwordx4 v{WOV}, s[76:79], s33 offen lds
    s_branch a_nodma2
    """)
    p.L("a_l2")
    wo_part(p, 0)

FSH = int(os.environ.get("FSH", "6"))
NL = int(os.environ.get('NL', '6'))
NREP = int(os.environ.get("NREP", "1"))
F3R = (2048 << FSH) + 256
WS_F3 = 0xC00000
def outproj_tail(p):
    CW = Opnd("tr", 64)
    OF = 4; ACC = 84; WF = 116; AW = 124; AO = 126; PV_ = 127; T = 8
    def own_flag():
        p.I(f"""
        s_mov_b64 exec, {(1 << NREP) - 1}
        buffer_store_dword v1, v0, {W}, s30 offen sc1
        s_mov_b64 exec, -1
        """)
    p.I(f"""
    s_mov_b64 exec, -1
    s_lshl_b32 s33, s13, 3
    s_lshl_b32 s34, s15, 1
    s_add_u32 s33, s33, s34
    s_add_u32 s33, s33, s16
    s_lshl_b32 s33, s33, 5
    s_add_u32 s33, s33, s12
    s_lshl_b32 s33, s33, {FSH}
    s_add_u32 s30, s33, {WS_F3}
    v_mul_u32_u24 v0, {F3R}, v2
    v_mov_b32 v1, s{TAG}
    s_cmp_ge_u32 s71, 12
    s_cbranch_scc1 o_go
    s_waitcnt vmcnt(0)
    """)
    own_flag()
    stamp(p, 8)
    stamp_flush(p, 12, 8, 14, kidx=0)
    p.I("s_endpgm")
    p.L("o_go")
    p.I(f"""
    s_sub_u32 s31, s71, 12
    s_and_b32 s17, s31, 1
    s_lshr_b32 s18, s31, 1
    s_lshl_b32 s33, s70, 1
    s_add_u32 s17, s17, s33
    s_barrier
    """)
    wo_part(p, 1)
    ACC = 84; WF = 100; AW = 116; AO = 124; PV_ = 125; OA_ = 126
    p.I(f"""
    v_lshrrev_b32 v{T}, 4, v2                     ; g
    v_bfe_u32 v{T+1}, v2, 2, 2                    ; r
    v_lshl_add_u32 v{T+2}, v{T}, 3, v{T+1}        ; 8g + r
    v_lshlrev_b32 v{T+2}, 7, v{T+2}
    v_and_b32 v{T+3}, 3, v2
    v_lshl_add_u32 v{T+2}, v{T+3}, 3, v{T+2}      ; + c*8
    v_and_b32 v{T+1}, 2, v{T+1}
    v_and_b32 v{T+3}, 1, v{T}
    v_or_b32 v{T+1}, v{T+1}, v{T+3}               ; z
    v_lshl_add_u32 v{AW}, v{T+1}, 5, v{T+2}
    v_xor_b32 v{AW+1}, 32, v{AW}
    v_xor_b32 v{AW+2}, 64, v{AW}
    v_xor_b32 v{AW+3}, 96, v{AW}
    v_add_u32 v{AW+4}, 0x8000, v{AW}
    v_add_u32 v{AW+5}, 0x8000, v{AW+1}
    v_add_u32 v{AW+6}, 0x8000, v{AW+2}
    v_add_u32 v{AW+7}, 0x8000, v{AW+3}
    v_and_b32 v{T+1}, 15, v2
    v_lshlrev_b32 v{AO}, 15, v{T}
    v_lshl_add_u32 v{AO}, v{T+1}, 4, v{AO}
    s_mul_i32 s33, s17, {16*NL}
    s_add_u32 s33, s33, {2048-256*NL}
    s_mul_i32 s34, s17, {16*(8-NL)}
    s_sub_u32 s34, s34, {16*NL}
    s_cmp_lt_u32 s14, {NL}
    s_cselect_b32 s33, s33, s34
    s_lshl_b32 s34, s14, 4
    s_add_u32 s33, s33, s34
    v_add_u32 v{T+1}, s33, v{T+1}
    v_mul_u32_u24 v{OA_}, 5120, v{T+1}
    v_lshl_add_u32 v{OA_}, v{T}, 4, v{OA_}
    s_lshl_b32 s22, s33, 4
    s_add_u32 s22, s22, {WS_O}
    s_lshr_b32 s33, s33, 5
    s_lshl_b32 s33, s33, {FSH+5}
    s_and_b32 s34, s18, {NREP-1}
    s_mul_i32 s34, s34, {F3R}
    s_add_u32 s33, s33, s34
    s_add_u32 s25, s33, {WS_F3}
    v_and_b32 v3, 31, v2
    v_lshlrev_b32 v3, {FSH}, v3
    buffer_load_dword v{PV_}, v3, {W}, s25 offen sc1
    s_mov_b32 s26, 0x01010101
    s_mov_b32 s27, 0
    s_mov_b32 s37, 0
    s_mov_b32 s36, 1
    """)
    for i in range(16): p.I(f"v_mov_b32 v{ACC+i}, 0")
    p.I("s_waitcnt vmcnt(4)")
    own_flag()
    stamp(p, 8)
    if DIAG: p.I("s_waitcnt lgkmcnt(0)")
    p.I("s_waitcnt vmcnt(1)")
    p.I("s_branch o_eval")
    def wread(step, t):
        hi = step >= 15
        for jh in range(2):
            p.I(f"ds_read_b64_tr_b16 {v(WF+4*t+2*jh,2)}, v{AW+t+4*hi} offset:{step*4096+jh*512-0x8000*hi}")
    p.L("o_loop")
    p.I("s_cmp_eq_u32 s26, 0"); p.I("s_cbranch_scc1 o_np")
    p.I(f"buffer_load_dword v{PV_}, v3, {W}, s25 offen sc1")
    p.I("s_branch o_np2")
    p.L("o_np")
    if os.environ.get("TST"):
        stamp(p, 1); p.I("s_waitcnt lgkmcnt(0)")
    p.I(f"buffer_load_dword v{PV_}, v3, s[76:79], 0 offen")
    p.L("o_np2")
    for g in range(4):
        L = f"o_c{g}"
        p.I(f"s_bitcmp1_b32 s27, {8*g}"); p.I(f"s_cbranch_scc0 {L}")
        for t in range(4): wread(5 * g, t)
        if g < 3:
            p.I(f"s_lshr_b32 s33, s27, {8*g+8}"); p.I("s_bcnt1_i32_b32 s33, s33")
            for n in range(3 - g, 0, -1):
                p.I(f"s_waitcnt vmcnt({5*n+1})")
                p.I(f"s_cmp_eq_u32 s33, {n}"); p.I(f"s_cbranch_scc1 {L}w")
        p.I("s_waitcnt vmcnt(1)")
        p.L(L + "w")
        for i in range(5):
            for t in range(4):
                p.I(f"s_waitcnt lgkmcnt({6 if i < 4 else 6-2*t})")
                d = ACC + 4 * t
                p.I(f"v_mfma_f32_16x16x32_bf16 {v(d,4)}, {v(WF+4*t,4)}, {v(OF+20*g+4*i,4)}, {v(d,4)}")
                if i < 4: wread(5 * g + i + 1, t)
        p.L(L)
    p.I(f"""
    s_cmp_eq_u32 s26, 0
    s_cbranch_scc1 o_done
    s_waitcnt vmcnt(0)
    """)
    p.L("o_eval")
    p.I(f"""
    v_cmp_ne_u32 vcc, s{TAG}, v{PV_}
    s_add_u32 s37, s37, 1
    s_lshr_b32 s33, vcc_lo, 1
    s_or_b32 s33, s33, vcc_lo
    s_lshr_b32 s34, s33, 2
    s_or_b32 s33, s33, s34
    s_lshr_b32 s34, s33, 4
    s_or_b32 s33, s33, s34
    s_cmp_gt_u32 s37, {SPIN}
    s_cselect_b32 s33, 0, s33
    s_andn2_b32 s27, s26, s33
    s_andn2_b32 s26, s26, s27
    """)
    for g in range(4):
        L = f"o_i{g}"
        p.I(f"s_bitcmp1_b32 s27, {8*g}"); p.I(f"s_cbranch_scc0 {L}")
        for i in range(5):
            p.I(f"s_add_u32 s23, s22, {(5*g+i)*131072}")
            p.I(f"buffer_load_dwordx4 {v(OF+20*g+4*i,4)}, v{AO}, {W}, s23 offen")
        p.L(L)
    p.I(f"""
    s_cmp_eq_u32 s36, 0
    s_cbranch_scc1 o_nb
    s_mov_b32 s36, 0
    s_barrier
    """)
    if os.environ.get("TST"):
        stamp(p, 10); p.I("s_waitcnt lgkmcnt(0)")
    p.L("o_nb")
    p.I(f"""
    s_cmp_lg_u32 s27, 0
    s_cbranch_scc1 o_loop
    s_sleep {os.environ.get("OPI", "3")}
    s_branch o_loop
    """)
    p.L("o_done")
    stamp(p, 9)
    if os.environ.get("TST"):
        p.I("s_waitcnt lgkmcnt(0)"); p.I(f"s_mov_b32 s{ST0+10}, s37"); p.I(f"s_mov_b32 s{ST0+12}, s27")
    p.I(f"""
    s_lshl_b32 s33, s18, 8
    s_add_u32 s33, s33, 2560
    s_nop 7
    """)
    for t in range(4):
        p.I(f"buffer_store_dwordx4 {v(ACC+4*t,4)}, v{OA_}, {OUT}, s33 offen offset:{64*t} {os.environ.get('OST', 'sc1 nt')}")
    if DIAG: p.I("s_waitcnt vmcnt(0)")
    stamp(p, 11)
    stamp_flush(p, 12, 8, 14, kidx=0)
    p.I("s_endpgm")

def gen_f3(p, name=NAME + "_kernel"):
    p.R(f".p2align 8\n.type {name},@function")
    p.L(name)
    if DIAG:
        for i in range(1, 12): p.I(f"s_mov_b32 s{ST0+2*i}, 0")
    stamp(p, 0)
    p.I(f"""
    s_load_dwordx4 s[88:91], s[0:1], {KA['out']}
    s_load_dwordx2 s[4:5], s[0:1], {KA['ws']}
    s_cmp_ge_u32 s2, 512
    s_cbranch_scc1 m_exit
    v_lshrrev_b32 v1, 6, v0
    v_and_b32 v2, 63, v0
    v_readfirstlane_b32 s14, v1
    s_and_b32 s70, s2, 7
    s_bfe_u32 s71, s2, 0x50003
    s_and_b32 s15, s14, 3
    s_lshl_b32 s33, s15, 12
    s_and_b32 s28, s14, 1
    s_lshr_b32 s29, s15, 1
    s_cmp_ge_u32 s2, 256
    s_cbranch_scc1 m_s
    s_setprio {os.environ.get('QPRIO', '3')}
    s_mov_b32 s81, 0
    v_mov_b32 v16, 0
    s_and_b32 s30, s70, 1
    s_mul_i32 s31, s71, 43
    s_lshr_b32 s31, s31, 7           ; j/3
    s_mul_i32 s32, s31, 3
    s_sub_u32 s17, s71, s32          ; j%3
    s_mul_i32 s12, s30, 3
    s_add_u32 s12, s12, s17
    s_cmp_lt_u32 s71, 12
    s_cbranch_scc1 m_tm
    s_sub_u32 s32, s71, 12
    s_mul_i32 s31, s32, 52
    s_lshr_b32 s31, s31, 8           ; jj/5
    s_mul_i32 s34, s31, 5
    s_sub_u32 s17, s32, s34          ; jj%5
    s_mul_i32 s12, s30, 5
    s_add_u32 s12, s12, s17
    s_add_u32 s12, s12, 6
    s_add_u32 s17, s17, 3
    """)
    p.L("m_tm")
    p.I(f"""
    s_lshr_b32 s13, s70, 1
    s_lshl_b32 s13, s13, 2
    s_add_u32 s13, s13, s31          ; n tile
    s_mul_i32 s31, s31, 5
    s_add_u32 s31, s31, 1
    s_lshr_b32 s31, s31, 1
    s_add_u32 s17, s17, s31          ; k rotation
    s_cmp_eq_u32 s13, 15
    s_cbranch_scc1 m_noq
    s_cmp_lt_u32 s14, 4
    s_cbranch_scc1 m_qc
    """)
    def descs():
        srd(p, 8, 4, WS_SIZE); srd(p, 92, 88, OUT_BYTES); srd(p, 84, 90, 256)
    def tagload():
        p.I(f"""
        s_waitcnt lgkmcnt(0)
        s_add_u32 s6, s4, {WS_EP}
        s_addc_u32 s7, s5, 0
        s_load_dword s{TAG}, s[6:7], 0
        """)
    qkv_loader(p)
    descs()
    p.I("s_branch m_att")
    p.L("m_qc")
    tagload(); descs()
    qkv_consumer(p)
    p.I("s_branch m_att")
    p.L("m_noq")
    p.I(f"s_load_dwordx4 s[24:27], s[0:1], {KA['B_x']}")
    tagload(); descs()
    if PFA == 1:
        p.I("s_cmp_lt_u32 s14, 4"); p.I("s_cbranch_scc1 m_noq2")
        pf_qkv(p, "pfc", 15, 16, 17)
        if PFB == 2: vpf_front(p)
        p.L("m_noq2")
    p.I(f"""
    s_waitcnt vmcnt(0) lgkmcnt(0)
    s_add_u32 s{TAG}, s{TAG}, 1
    s_sleep 100
    """)
    p.L("m_att")
    def att_wait():
        wo_setup(p)
        p.I(f"""
        s_cmp_lg_u32 s14, 0
        s_cbranch_scc1 a_wait
        s_mul_i32 s33, s12, 20
        s_lshr_b32 s34, s33, 6
        s_add_u32 s33, s33, 19
        s_lshr_b32 s33, s33, 6
        s_cmp_eq_u32 s33, s34
        s_cselect_b32 s33, 1, 0x101      ; w lanes
        s_lshl_b32 s40, s33, s13
        s_mul_i32 s41, s33, 0xff
        s_lshl_b32 s34, s41, 16
        s_or_b32 s40, s40, s34
        s_mul_i32 s72, s12, {FST}
        s_add_u32 s72, s72, {WS_F1}
        """)
        if int(os.environ.get("PD", "0")): p.I(f"s_sleep {os.environ['PD']}")
        poll_flags(p, 72, 0, 120, 33, wide=True, sleep=int(os.environ.get("PI", "2")))
        p.L("a_wait")
        p.I("s_barrier")
    def att_post():
        p.I("s_cmp_lg_u32 s14, 0"); p.I("s_cbranch_scc1 a_nocount")
        count_in(p, 0)
        p.L("a_nocount")
    def xor_or():
        p.I(f"""
        v_xor_b32 v116, s{TAG}, v116
        v_xor_b32 v117, s{TAG}, v117
        v_xor_b32 v118, s{TAG}, v118
        v_xor_b32 v119, s{TAG}, v119
        v_or3_b32 v116, v116, v117, v118
        v_or_b32 v116, v116, v119
        v_cmp_ne_u32 vcc, 0, v116
        """)
    def att_fast(first_dma):
        p.I("s_cmp_eq_u32 s81, 0"); p.I("s_cbranch_scc1 a_nopub")
        q_publish(p)
        p.L("a_nopub")
        wo_setup(p)
        p.I(f"""
        s_mov_b32 s38, 0
        s_cmp_lg_u32 s14, 4
        s_cbranch_scc1 a_wait
        s_mul_i32 s33, s12, 20
        s_lshr_b32 s34, s33, 6
        s_add_u32 s33, s33, 19
        s_lshr_b32 s33, s33, 6
        s_cmp_eq_u32 s33, s34
        s_cselect_b32 s33, 1, 0x101      ; w lanes
        s_lshl_b32 s42, s33, s13
        s_mul_i32 s75, s33, 0xff
        s_lshl_b32 s74, s75, 16
        s_mul_i32 s72, s12, {FST}
        s_add_u32 s72, s72, {WS_F1}
        s_mov_b32 s38, 1
        s_mov_b32 s43, 0
        """)
        if int(os.environ.get("PD", "0")): p.I(f"s_sleep {os.environ['PD']}")
        p.L("a_fp")
        p.I(f"""
        buffer_load_dwordx4 v[116:119], v111, {W}, s72 offen sc1
        s_add_u32 s43, s43, 1
        s_waitcnt vmcnt(0)
        """)
        xor_or()
        p.I(f"""
        s_and_b64 s[40:41], vcc, s[74:75]
        s_lshr_b32 s40, s40, 16
        s_or_b32 s40, s40, s41
        s_lshr_b32 s41, s40, 8
        s_or_b32 s40, s40, s41
        s_andn2_b32 s40, 0xff, s40
        s_lshr_b32 s41, s40, 1
        s_lshl_b32 s33, s40, 7
        s_or_b32 s41, s41, s33
        s_and_b32 s40, s40, s41
        s_ff1_i32_b32 s68, s40
        s_and_b32 s41, vcc_lo, s42
        s_cselect_b32 s40, 0, s40
        s_cmp_lg_u32 s40, 0
        s_cbranch_scc1 a_fp_d
        s_sleep {os.environ.get("PI", "2")}
        s_cmp_lt_u32 s43, {SPIN}
        s_cbranch_scc1 a_fp
        """)
        p.L("a_fp_d")
        p.I("s_and_b32 s68, s68, 7")
        first_dma()
        p.L("a_wait")
        p.I("s_barrier")
    def b_issue():
        p.I("s_cmp_lg_u32 s38, 0"); p.I("s_cbranch_scc1 a_bi"); p.L("a_nb1")
    def b_check():
        p.I("s_cmp_eq_u32 s38, 0"); p.I("s_cbranch_scc0 a_bchk"); p.L("a_bok")
    if FAST:
        k2_attn.attn_body(p, "a", fast=att_fast, post=att_post, kidx=0, tail=outproj_tail, late=att_late, b_issue=b_issue, b_check=b_check)
        p.L("a_bi")
        p.I(f"""
        s_cmp_ge_u32 s26, 6
        s_cselect_b32 s38, 0, s38
        s_cbranch_scc1 a_nb1
        buffer_load_dwordx4 v[116:119], v111, {W}, s72 offen sc1
        s_branch a_nb1
        """)
        p.L("a_bchk")
        xor_or()
        p.I(f"""
        s_and_b32 s41, s75, 0x101
        s_lshl_b32 s41, s41, s68
        s_lshl_b32 s40, s41, 16
        s_and_b64 s[42:43], vcc, s[74:75]
        s_cselect_b32 s38, 1, 0
        s_and_b64 vcc, vcc, s[40:41]
        s_cbranch_scc0 a_bok
        """)
        poll_flags(p, 72, 0, 114, 33, wide=True, sleep=1, addr=111)
        p.I("s_branch a_bok")
    else:
        k2_attn.attn_body(p, "a", wait=att_wait, post=att_post, kidx=0, tail=outproj_tail, late=att_late)
    p.L("m_s")
    p.I(f"s_setprio {os.environ.get('SPRIO', '0')}")
    p.I("s_cmp_lt_u32 s71, 12"); p.I("s_cbranch_scc1 m_sy")
    p.I("s_cmp_ge_u32 s14, 4"); p.I("s_cbranch_scc1 l_bu"); p.I("s_branch c_bu")
    p.L("m_sy")
    if PFB == 1:
        p.I("s_cmp_lt_u32 s14, 4"); p.I("s_cbranch_scc1 m_s2")
        vpf_front(p)
        p.L("m_s2")
    tagload(); descs()
    p.I(f"""
    v_mov_b32 v4, 0
    ds_write_b32 v4, v4
    s_waitcnt lgkmcnt(0)
    s_add_u32 s{TAG}, s{TAG}, 1
    s_barrier
    s_cmp_lg_u32 s14, 0
    s_cbranch_scc1 s_nocount
    """)
    count_in(p, 4)
    p.L("s_nocount")
    p.I(f"""
    s_and_b32 s30, s71, 30
    s_cmp_eq_u32 s30, 10
    s_cbranch_scc1 s_idle
    s_cmp_lt_u32 s14, 4
    s_cbranch_scc1 c_y
    """)
    for _ in range(int(os.environ.get('YN', '3'))): p.I(f"s_sleep {os.environ.get('YS', '110')}")
    p.I("s_branch l_y")
    p.L("l_bu")
    bud = int(os.environ.get("BUD", "0"))
    while bud > 0:
        p.I(f"s_sleep {min(bud, 127)}"); bud -= 127
    buq = int(os.environ.get("BUQ", "0"))
    if buq:
        p.I(f"""
        s_sub_u32 s30, s71, 12
        s_mul_i32 s30, s30, 52
        s_lshr_b32 s30, s30, 8
        s_lshr_b32 s31, s70, 1
        s_lshl_b32 s31, s31, 2
        s_add_u32 s30, s30, s31
        s_cmp_ge_u32 s30, {os.environ.get("NQ", "5")}
        s_cbranch_scc1 l_bu2
        """)
        while buq > 0:
            p.I(f"s_sleep {min(buq, 127)}"); buq -= 127
        p.L("l_bu2")
    bu_loader(p, None)
    p.I("s_endpgm")
    p.L("l_y")
    p.I("s_setprio 3")
    p.I("s_waitcnt vmcnt(0)")
    y_loader(p)
    p.I("s_endpgm")
    p.L("c_bu")
    def bu_mid():
        tagload(); descs()
    bu_consumer(p, bu_mid)
    p.I("s_branch c_end")
    p.L("c_y")
    y_consumer(p)
    p.L("c_end")
    p.I(f"""
    s_cmp_lg_u32 s14, 0
    s_cbranch_scc1 c_fin
    s_cmp_lg_u32 s2, 511
    s_cbranch_scc1 c_fin
    s_mov_b32 s30, 0
    v_mov_b32 v4, 0
    """)
    p.L("c_ep")
    p.I(f"""
    buffer_load_dword v5, v4, {DBG}, 0 offen sc1
    s_add_u32 s30, s30, 1
    s_waitcnt vmcnt(0)
    v_readfirstlane_b32 s31, v5
    s_cmp_ge_u32 s31, 512
    s_cbranch_scc1 c_ep_d
    s_sleep 16
    s_cmp_lt_u32 s30, {SPIN}
    s_cbranch_scc1 c_ep
    """)
    p.L("c_ep_d")
    p.I(f"s_mov_b32 s30, {WS_EP}")
    put_flag(p, 30, 4)
    p.L("c_fin")
    stamp_flush(p, 11, 8, 14, kidx=0)
    p.I("s_endpgm")
    p.L("s_idle")
    def code_touch(tag):
        p.I(f"""
        s_getpc_b64 s[30:31]
        """)
        p.L(f"ct_{tag}")
        p.I(f"""
        s_sub_u32 s30, s30, ct_{tag}-{name}
        s_subb_u32 s31, s31, 0
        v_lshlrev_b32 v18, 7, v0
        v_min_u32 v18, m_exit-{name}, v18
        v_mov_b32 v19, s31
        v_add_co_u32 v18, vcc, s30, v18
        v_addc_co_u32 v19, vcc, 0, v19, vcc
        global_load_dword v20, v[18:19], off
        s_waitcnt vmcnt(0)
        """)
    CT = int(os.environ.get("CT", "3"))
    if CT & 1:
        p.I("s_bitcmp1_b32 s71, 0"); p.I("s_cbranch_scc1 ct_skip")
        code_touch("a")
        p.L("ct_skip")
    WPF = int(os.environ.get("WPF", "5"))
    if WPF:
        p.I(f"""
        s_load_dwordx2 s[20:21], s[0:1], {KA['wo']}
        v_lshlrev_b32 v16, 7, v2
        s_sub_u32 s34, s2, 336
        s_lshl_b32 s34, s34, 3
        s_add_u32 s34, s34, s14
        s_mul_i32 s34, s34, {50*128}
        s_waitcnt lgkmcnt(0)
        """)
        srd(p, 36, 20, 640*640*2)
        for _ in range(WPF): p.I("s_sleep 110")
        p.I("s_mov_b32 exec_hi, 0x3ffff")
        p.I(f"buffer_load_dword v17, v16, s[36:39], s34 offen")
        p.I("s_mov_b64 exec, -1")
        p.I("s_waitcnt vmcnt(0)")
    if CT & 2:
        p.I("s_bitcmp1_b32 s71, 0"); p.I("s_cbranch_scc0 m_exit")
        code_touch("b")
    p.L("m_exit")
    p.I("s_endpgm")
    return dict(name=name, grid=512, block=512, lds=81920, vgpr=128)
```

```python
from engine import *
from k2_bu import cmul, cfma, kc_loader_voff, LOG2E, INV2PI
import k2_attn

WS_E = 0xA80000
WS_F1 = 0xB00000
WS_EP = 0xBF0000
FAST = int(os.environ.get('FAST', '1'))
LATEC = int(os.environ.get('LATEC', '1'))
HASQ = 68
QONLY = int(os.environ.get('QONLY', '0'))
BD = int(os.environ.get("BD", "0"))
PFA = int(os.environ.get("PFA", "1")); PFB = int(os.environ.get("PFB", "1"))
EQ = Engine(Opnd("kc", 128), Opnd("tr", 128), 10, NU=5, early=True, P0=int(os.environ.get("P0Q", "3")))
W = "s[8:11]"; DBG = "s[84:87]"; OUT = "s[92:95]"
TAG = 80
SPIN = 200000
GOIT = int(os.environ.get('GOIT', '7'))
YGATE = 0
YPF = 0
RS = int(os.environ.get('RS', '0'))
PATB = eval(os.environ.get('PATB', 'None')); PATY = eval(os.environ.get('PATY', 'None'))

EB = Engine(Opnd("kc", 128), Opnd("kc", 128), 10, NU=5, early=True, P0=int(os.environ.get("P0B", "3")), pat=PATB)
EY = Engine(Opnd("tb", 128), Opnd("kc", 128), 20, NU=5, early=True, P0=3, pat=PATY)
CPF = int(os.environ.get("CPF", "4"))

def put_flag(p, soff, vt):
    p.I(f"""
    v_mov_b32 v{vt}, 0
    v_mov_b32 v{vt+1}, s{TAG}
    s_mov_b64 exec, 1
    buffer_store_dword v{vt+1}, v{vt}, {W}, s{soff} offen sc1
    s_mov_b64 exec, -1
    """)

def count_in(p, vt):
    p.I(f"""
    v_mov_b32 v{vt}, 0
    v_mov_b32 v{vt+1}, 1
    s_mov_b64 exec, 1
    buffer_atomic_add v{vt+1}, v{vt}, {DBG}, 0 offen sc1
    s_mov_b64 exec, -1
    """)

QST = 1
def pf_qkv(p, name, sw, vt, vd):
    p.I(f"""
    v_lshlrev_b32 v{vt}, 7, v2
    s_mul_i32 s40, s2, 10240
    s_mul_i32 s41, s{sw}, 5120
    s_add_u32 s40, s40, s41
    s_mul_i32 s41, s2, 9600
    s_mul_i32 s42, s{sw}, 4480
    s_add_u32 s41, s41, s42
    s_sub_u32 s41, s41, 8960
    s_mov_b32 s38, {2048*640*2}
    s_cmp_ge_u32 s{sw}, 2
    s_cselect_b32 s36, s26, s24
    s_cselect_b32 s37, s27, s25
    s_cselect_b32 s38, {640*1920*2}, s38
    s_cselect_b32 s40, s41, s40
    s_and_b32 s37, s37, 0xffff
    s_mov_b32 s39, 0x00020000
    s_mov_b32 exec_hi, 0xff
    buffer_load_dword v{vd}, v{vt}, s[36:39], s40 offen
    s_mov_b64 exec, -1
    """)
def vpf_front(p):
    p.I(f"""
    s_lshl_b32 s34, s15, 3
    s_add_u32 s34, s34, {KA['Bre'] - 16}
    s_cmp_ge_u32 s15, 2
    s_cselect_b32 s34, s34, {KA['A_x']}
    s_load_dwordx2 s[36:37], s[0:1], s34
    v_lshlrev_b32 v16, 7, v2
    s_and_b32 s35, s2, 255
    s_mul_i32 s40, s35, 10240
    s_mul_i32 s41, s15, 5120
    s_add_u32 s40, s40, s41
    s_mul_i32 s41, s35, 3200
    s_mov_b32 s38, {2048*640*2}
    s_cmp_ge_u32 s15, 2
    s_cselect_b32 s38, {640*640*2}, s38
    s_cselect_b32 s40, s41, s40
    s_cselect_b32 s42, 0x1ffffff, -1
    s_cselect_b32 s43, 0, 0xff
    s_mov_b32 s39, 0x00020000
    s_waitcnt lgkmcnt(0)
    s_and_b32 s37, s37, 0xffff
    """)
    if BD: p.I(f"s_sleep {BD}")
    p.I(f"""
    s_mov_b64 exec, s[42:43]
    buffer_load_dword v17, v16, s[36:39], s40 offen
    s_mov_b64 exec, -1
    """)
def vpf_late(p):
    p.I(f"""
    s_cmp_eq_u32 s15, 0
    s_cbranch_scc1 vl_d
    s_lshl_b32 s34, s15, 3
    s_add_u32 s34, s34, {KA['Cre'] - 8}
    s_cmp_eq_u32 s15, 3
    s_cselect_b32 s34, {KA['wo']}, s34
    s_load_dwordx2 s[36:37], s[0:1], s34
    v_lshlrev_b32 v16, 7, v2
    s_and_b32 s35, s2, 255
    s_mul_i32 s40, s35, 5120
    s_mov_b32 s38, {640*640*2}
    s_mov_b32 s39, 0x00020000
    s_waitcnt lgkmcnt(0)
    s_and_b32 s37, s37, 0xffff
    s_mov_b32 exec_hi, 0xff
    buffer_load_dword v17, v16, s[36:39], s40 offen
    s_mov_b64 exec, -1
    s_waitcnt vmcnt(0)
    """)
    p.L("vl_d")

def qkv_loader(p):
    p.I(f"""
    s_load_dwordx4 s[24:27], s[0:1], {KA['B_x']}
    s_lshl_b32 s30, s12, 7
    s_lshl_b32 s31, s15, 5
    s_add_u32 s30, s30, s31
    s_mul_i32 s30, s30, 1280
    v_lshrrev_b32 v3, 3, v2
    v_mul_u32_u24 v3, 1280, v3
    v_add_u32 v3, s30, v3
    s_waitcnt lgkmcnt(0)
    """)
    if PFA == 1: pf_qkv(p, "pfa", 15, 16, 17)
    if PFB == 2: vpf_front(p)
    if int(os.environ.get("PFW", "0")): p.I("s_waitcnt vmcnt(0)")
    kc_loader_voff(p, 4, 3, 2, 8 * 1280, 12)
    p.I(f"""
    s_lshl_b32 s31, s15, 4
    s_mul_i32 s31, s31, 3840
    s_lshl_b32 s32, s13, 8
    s_add_u32 s31, s31, s32
    v_lshrrev_b32 v12, 4, v2
    v_mul_u32_u24 v3, 3840, v12
    v_add_u32 v3, s31, v3
    v_and_b32 v13, 15, v2
    v_lshlrev_b32 v14, 2, v12
    v_xor_b32 v13, v13, v14
    v_lshl_add_u32 v8, v13, 4, v3
    v_add_u32 v9, {15360-1024}, v8
    v_add_u32 v10, {2*(15360-1024)}, v8
    v_add_u32 v11, {3*(15360-1024)}, v8
    """)
    srd(p, 36, 24, 2048*640*2)
    srd(p, 40, 26, 640*1920*2)
    p.I(f"""
    s_add_u32 s6, s4, {WS_EP}
    s_addc_u32 s7, s5, 0
    s_load_dword s{TAG}, s[6:7], 0
    """)
    p.I("s_mov_b32 s34, s17")
    if os.environ.get("XR"): p.I("s_add_u32 s34, s34, s70")
    kmod(p, 34, 10)
    p.I(f"s_mul_i32 s35, s34, {64*3840}"); p.I("s_lshl_b32 s34, s34, 7")
    def issue(st, which, off):
        p.I(f"s_add_u32 m0, s33, {off}")
        for i in range(4):
            p.I(f"buffer_load_dwordx4 v{4+4*which+i}, s[{36+4*which}:{39+4*which}], s{34+which} offen offset:{i*1024} lds")
        kadv(p, 34 + which, 128 if which == 0 else 64*3840, 10)
    def hook():
        p.I("s_waitcnt lgkmcnt(0)"); p.I(f"s_add_u32 s{TAG}, s{TAG}, 1")
    EQ.loader(p, issue, hook=hook, stamps=4 if os.environ.get("LST") else False)
    if os.environ.get("LST"):
        srd(p, 8, 4, WS_SIZE); stamp_flush(p, 12, 8, 14, kidx=1, vt=20); p.I("s_mov_b64 exec, -1")

def qkv_consumer(p):
    E = EQ
    AD = 4; FR = 28; ACC = 60; FA = 16
    assert AD + E.naddr() <= FA and FR + 2 * E.fr_per <= ACC
    E.cons_setup(p, AD, 2, 28, 29, FR, 30)
    for i in range(64): p.I(f"v_mov_b32 v{ACC+i}, 0")
    T = FR
    p.I(f"""
    v_and_b32 v126, 31, v2
    v_lshrrev_b32 v127, 5, v2
    s_cmp_ge_u32 s13, 5
    s_cselect_b32 s30, 1, 0
    s_cmp_ge_u32 s13, 10
    s_addc_u32 s30, s30, 0           ; ty
    s_mul_i32 s31, s30, 5
    s_sub_u32 s31, s13, s31
    s_lshl_b32 s31, s31, 1
    s_add_u32 s31, s31, s29
    s_lshl_b32 s32, s31, 6
    s_mul_i32 s33, s32, 3277
    s_lshr_b32 s33, s33, 16
    s_add_u32 s32, s32, 63
    s_mul_i32 s32, s32, 3277
    s_lshr_b32 s32, s32, 16
    v_add_u32 v{T}, s33, v2
    v_mul_u32_u24 v{T+1}, 20, v{T}
    v_lshrrev_b32 v{T+1}, 6, v{T+1}
    v_sub_u32 v{T+1}, s31, v{T+1}    ; w
    v_mul_u32_u24 v{T+2}, {FST}, v{T}
    v_lshl_add_u32 v{T+2}, v{T+1}, 7, v{T+2}
    s_lshl_b32 s30, s30, 8
    s_lshl_b32 s34, s12, 3
    s_add_u32 s30, s30, s34
    s_lshl_b32 s34, s28, 2
    s_add_u32 s30, s30, s34
    s_add_u32 s30, s30, {WS_F1}
    v_add_u32 v{FA}, s30, v{T+2}
    v_cmp_ge_u32 s[74:75], s32, v{T}
    s_waitcnt lgkmcnt(0)
    s_add_u32 s{TAG}, s{TAG}, 1
    v_mov_b32 v{FA+1}, s{TAG}
    s_cmp_ge_u32 s13, 10
    s_cbranch_scc1 q_consV
    s_lshl_b32 s30, s13, 4
    s_lshl_b32 s31, s29, 3
    s_add_u32 s30, s30, s31
    s_lshl_b32 s30, s30, 15
    s_lshl_b32 s31, s12, 11
    s_add_u32 s30, s30, s31
    s_lshl_b32 s31, s28, 10
    s_add_u32 s30, s30, s31
    v_lshlrev_b32 v124, 15, v127
    v_lshl_add_u32 v124, v126, 4, v124
    v_add_u32 v124, s30, v124
    """)
    E.consumer(p, AD, FR, ACC, False, 34, "q_lqk")
    stamp(p, 1)
    n = 0
    for t in range(2):
        for ap in range(2):
            p.I(f"s_mov_b32 s{32+(n%2)}, {WS_QK + (4*t+2*ap)*32768}")
            for u in range(2):
                d = ACC + 32 * t + 16 * u + 8 * ap
                o = FR + 4 * ((2 * n + u) % 8)
                for j in range(4):
                    p.I(f"v_cvt_pk_bf16_f32 v{o+j}, v{d+2*j}, v{d+2*j+1}")
                p.I(f"buffer_store_dwordx4 {v(o,4)}, v124, {W}, s{32+(n%2)} offen offset:{u*512} sc1")
            n += 1
    p.I("s_branch q_pub")
    p.L("q_consV")
    p.I(f"""
    v_and_b32 v1, 19, v126
    v_bfe_u32 v0, v126, 2, 1
    v_bfe_u32 v3, v126, 3, 1
    v_lshl_add_u32 v1, v0, 3, v1
    v_lshl_add_u32 v1, v3, 2, v1
    s_sub_u32 s30, s13, 10
    s_lshl_b32 s30, s30, 7
    s_lshl_b32 s31, s29, 6
    s_add_u32 s30, s30, s31
    v_add_u32 v1, s30, v1
    s_lshl_b32 s31, s12, 2
    s_lshl_b32 s32, s28, 1
    s_add_u32 s31, s31, s32
    s_mul_i32 s31, s31, 1280
    s_add_u32 s31, s31, {WS_V}
    s_mov_b32 s35, 81920
    """)
    for t in range(2):
        p.I(f"""
        v_add_u32 v{T}, {32*t}, v1
        v_mul_u32_u24 v{T+1}, 3277, v{T}
        v_lshrrev_b32 v{T+1}, 16, v{T+1}
        v_mul_u32_u24 v{T+2}, 20, v{T+1}
        v_sub_u32 v{T+2}, v{T}, v{T+2}
        v_and_b32 v{T+3}, 1, v{T+1}
        v_lshlrev_b32 v{T+3}, 2, v{T+3}
        v_sub_u32 v{T+2}, v{T+2}, v{T+3}
        v_add_u32 v{T+4}, 20, v{T+2}
        v_cmp_gt_i32 vcc, 0, v{T+2}
        v_cndmask_b32 v{T+2}, v{T+2}, v{T+4}, vcc
        v_and_b32 v{T+4}, 3, v{T+2}
        v_bfe_u32 v{T+5}, v{T+2}, 2, 1
        v_bfe_u32 v{T+6}, v{T+2}, 3, 1
        v_lshl_add_u32 v{T+4}, v{T+5}, 3, v{T+4}
        v_lshl_add_u32 v{T+4}, v{T+6}, 2, v{T+4}
        v_cmp_gt_u32 vcc, 16, v{T+2}
        v_cndmask_b32 v{T+2}, v{T+2}, v{T+4}, vcc
        v_mul_lo_u32 v{T+1}, v{T+1}, s35
        v_lshl_add_u32 v{T+1}, v{T+2}, 4, v{T+1}
        v_mul_u32_u24 v{T+3}, 320, v127
        v_add3_u32 v{124+t}, v{T+1}, v{T+3}, s31
        """)
    E.consumer(p, AD, FR, ACC, True, 34, "q_lv")
    stamp(p, 1)
    n = 0
    for t in range(2):
        for u in range(2):
            for aa in range(2):
                d = ACC + 32 * t + 16 * u + 8 * aa
                o = FR + 4 * (n % 8)
                for j in range(4):
                    p.I(f"v_cvt_pk_bf16_f32 v{o+j}, v{d+2*j}, v{d+2*j+1}")
                p.I(f"buffer_store_dwordx4 {v(o,4)}, v{124+t}, {W}, 0 offen offset:{u*1280+aa*640} sc1")
                n += 1
    p.L("q_pub")
    if FAST: p.I("s_mov_b32 s81, 1")
    else: q_publish(p)

def q_publish(p):
    p.I(f"""
    s_waitcnt vmcnt(0)
    s_mov_b64 exec, s[74:75]
    buffer_store_dword v17, v16, {W}, 0 offen sc1
    s_mov_b64 exec, -1
    """)
    stamp(p, 10)

def tile20(p, sj):
    p.I(f"""
    s_and_b32 s12, s70, 3
    s_lshl_b32 s12, s12, 2
    s_and_b32 s13, s{sj}, 3
    s_add_u32 s12, s12, s13
    s_lshr_b32 s13, s70, 2
    s_mul_i32 s13, s13, 5
    s_lshr_b32 s31, s{sj}, 2
    s_add_u32 s13, s13, s31
    """)

def bu_loader(p, hook):
    p.I(f"""
    s_load_dwordx2 s[16:17], s[0:1], {KA['A_x']}
    s_load_dwordx4 s[20:23], s[0:1], {KA['Bre']}
    s_sub_u32 s30, s71, 12
    """)
    tile20(p, 30)
    p.I(f"""
    s_lshr_b32 s30, s15, 1
    s_and_b32 s31, s15, 1
    s_lshl_b32 s34, s12, 7
    s_lshl_b32 s35, s30, 6
    s_add_u32 s34, s34, s35
    s_lshl_b32 s35, s31, 4
    s_add_u32 s34, s34, s35
    s_mul_i32 s34, s34, 1280
    v_lshrrev_b32 v3, 5, v2
    v_bfe_u32 v12, v2, 3, 2
    v_lshl_add_u32 v3, v3, 5, v12
    v_mul_u32_u24 v3, 1280, v3
    v_add_u32 v3, s34, v3
    """)
    kc_loader_voff(p, 4, 3, 2, 4 * 1280, 12)
    p.I(f"""
    s_lshl_b32 s34, s13, 6
    s_lshl_b32 s35, s30, 5
    s_add_u32 s34, s34, s35
    s_mul_i32 s34, s34, 1280
    v_lshrrev_b32 v3, 3, v2
    v_mul_u32_u24 v3, 1280, v3
    v_add_u32 v3, s34, v3
    """)
    kc_loader_voff(p, 8, 3, 2, 8 * 1280, 12)
    p.I(f"""
    s_waitcnt lgkmcnt(0)
    s_cmp_eq_u32 s31, 0
    s_cselect_b32 s18, s20, s22
    s_cselect_b32 s19, s21, s23
    """)
    srd(p, 36, 16, 2048*640*2)
    srd(p, 40, 18, 640*640*2)
    p.I(f"""
    s_sub_u32 s30, s71, 12
    s_and_b32 s34, s30, 3
    s_mul_i32 s34, s34, 5
    s_add_u32 s34, s34, 1
    s_lshr_b32 s34, s34, 1
    s_lshr_b32 s35, s30, 2
    s_lshl_b32 s35, s35, 1
    s_add_u32 s34, s34, s35
    """)
    if os.environ.get("XR"): p.I("s_add_u32 s34, s34, s70")
    kmod(p, 34, 10)
    p.I("s_lshl_b32 s34, s34, 7"); p.I("s_mov_b32 s35, s34")
    def issue(st, which, off):
        p.I(f"s_add_u32 m0, s33, {off}")
        for i in range(4):
            p.I(f"buffer_load_dwordx4 v{4+4*which+i}, s[{36+4*which}:{39+4*which}], s{34+which} offen offset:{i*1024} lds")
        kadv(p, 34 + which, 128, 10)
    def gload(st, which, i, vd):
        if i == 0: p.I(f"s_movk_i32 s32, {st*128}")
        p.I(f"buffer_load_dwordx4 {v(vd,4)}, v{4+4*which+i}, s[{36+4*which}:{39+4*which}], s32 offen offset:{i*1024}")
    if RS:
        EB.rs_setup(p, 12, 2, 15)
        EB.loader_rs(p, gload, 12, 16, 28)
    else: EB.loader(p, issue, hook=hook, stamps=4 if os.environ.get("LST") else False)
    if os.environ.get("LST"):
        srd(p, 8, 4, WS_SIZE); stamp_flush(p, 12, 8, 14, kidx=1, vt=20)

def bu_consumer(p, mid):
    E = EB; name = "b"
    AD = 4; FR = 20; ACC = 52; CO = 116
    assert AD + E.naddr() <= FR and FR + 2 * E.fr_per <= ACC
    LA, LB, CR, CI, L32R, L32I, L64R, L64I, VP, VH = range(CO, CO + 10)
    T = FR
    p.I(f"""
    s_load_dwordx4 s[24:27], s[0:1], {KA['Lre']}
    s_load_dwordx2 s[16:17], s[0:1], {KA['logdt']}
    s_sub_u32 s30, s71, 12
    """)
    tile20(p, 30)
    p.I(f"""
    s_lshl_b32 s34, s13, 6
    s_lshl_b32 s35, s29, 5
    s_add_u32 s34, s34, s35
    v_and_b32 v{VP}, 31, v2
    v_add_u32 v{VP}, s34, v{VP}
    v_lshrrev_b32 v{VH}, 5, v2
    v_lshlrev_b32 v{T+8}, 1, v{VP}
    s_waitcnt lgkmcnt(0)
    global_load_ushort v{CO}, v{T+8}, s[24:25]
    global_load_ushort v{CO+1}, v{T+8}, s[26:27]
    global_load_ushort v{CO+2}, v{T+8}, s[16:17]
    """)
    mid()
    E.cons_setup(p, AD, 2, 28, 29, T, 32)
    for i in range(64): p.I(f"v_mov_b32 v{ACC+i}, 0")
    def coefs():
        lre, lim, dt = T + 9, T + 10, T + 11
        p.I(f"""
        s_mov_b32 s32, {LOG2E:#x}
        s_mov_b32 s33, {INV2PI:#x}
        s_waitcnt vmcnt(0)
        v_lshlrev_b32 v{lre}, 16, v{CO}
        v_lshlrev_b32 v{lim}, 16, v{CO+1}
        v_lshlrev_b32 v{dt}, 16, v{CO+2}
        v_mul_f32 v{dt}, s32, v{dt}
        v_exp_f32 v{dt}, v{dt}
        v_cvt_pk_bf16_f32 v{dt}, v{dt}, v{dt}
        v_lshlrev_b32 v{dt}, 16, v{dt}
        v_mul_f32 v{T}, v{dt}, v{lre}
        v_mul_f32 v{T+1}, v{dt}, v{lim}
        v_mul_f32 v{T}, s32, v{T}
        v_mul_f32 v{T+1}, s33, v{T+1}
        v_exp_f32 v{T}, v{T}
        v_fract_f32 v{T+1}, v{T+1}
        v_cos_f32 v{T+2}, v{T+1}
        v_sin_f32 v{T+3}, v{T+1}
        v_mul_f32 v{LA}, v{T}, v{T+2}
        v_mul_f32 v{LB}, v{T}, v{T+3}
        v_add_f32 v{T+4}, -1.0, v{LA}
        v_mul_f32 v{T+5}, v{lre}, v{lre}
        v_fma_f32 v{T+5}, v{lim}, v{lim}, v{T+5}
        v_rcp_f32 v{T+5}, v{T+5}
        v_mul_f32 v{CR}, v{T+4}, v{lre}
        v_add_f32 v{T+5}, v{T+5}, v{T+5}
        v_fma_f32 v{CR}, v{LB}, v{lim}, v{CR}
        v_mul_f32 v{CI}, v{LB}, v{lre}
        v_fma_f32 v{CI}, -v{T+4}, v{lim}, v{CI}
        v_mul_f32 v{CR}, v{CR}, v{T+5}
        v_mul_f32 v{CI}, v{CI}, v{T+5}
        """)
        cmul(p, L32R, L32I, LA, LB, LA, LB, T)
        for _ in range(4): cmul(p, L32R, L32I, L32R, L32I, L32R, L32I, T)
        cmul(p, L64R, L64I, L32R, L32I, L32R, L32I, T)
    if not os.environ.get('CLATE'): coefs()
    p.I("s_waitcnt lgkmcnt(0)"); p.I(f"s_add_u32 s{TAG}, s{TAG}, 1")
    p.I(f"s_setprio {PATB[-1] if PATB else 0}")
    E.consumer(p, AD, FR, ACC, True, 32, f"{name}_loop")

    p.I("s_setprio 3")
    stamp(p, 3)
    if os.environ.get('CLATE'): coefs()
    p.I("s_nop 7")
    RE = lambda s: ACC + s
    IM = lambda s: ACC + 32 + s
    ELR, ELI = 6, 7
    er, ei, nr, ni = RE(0), IM(0), 8, 9
    for s_ in range(1, 32):
        p.I(f"""
        v_fma_f32 v{nr}, v{LA}, v{er}, v{RE(s_)}
        v_fma_f32 v{ni}, v{LA}, v{ei}, v{IM(s_)}
        v_fma_f32 v{nr}, -v{LB}, v{ei}, v{nr}
        v_fma_f32 v{ni}, v{LB}, v{er}, v{ni}
        """)
        er, ei, nr, ni = (nr, ni, 4, 5) if s_ == 1 else (nr, ni, er, ei)
    p.I(f"""
    v_mov_b32 v{ELR}, v{er}
    v_mov_b32 v{ELI}, v{ei}
    v_mov_b32 v10, v{er}
    v_mov_b32 v11, v{ei}
    v_permlane32_swap_b32 v{ELR}, v10
    v_permlane32_swap_b32 v{ELI}, v11
    """)
    cfma(p, 12, 14, L32R, L32I, ELR, ELI, 10, 11, 16)
    p.I(f"""
    v_mov_b32 v13, s{TAG}
    v_mov_b32 v15, s{TAG}
    s_lshl_b32 s34, s12, 1
    s_add_u32 s34, s34, s28          ; cidx
    s_mul_i32 s35, s34, 10240
    s_add_u32 s36, s35, {WS_E}
    s_add_u32 s35, s35, {WS_E - 32*10240}
    v_lshlrev_b32 v16, 4, v{VP}
    s_mov_b32 exec_hi, 0
    buffer_store_dwordx4 v[12:15], v16, {W}, s36 offen sc1
    s_mov_b64 exec, -1
    v_mul_u32_u24 v17, {16*10240}, v{VH}
    v_add_u32 v17, v17, v16
    """)
    G = FR
    def preset():
        for k in range(8):
            p.I(f"v_mov_b32 v{G+4*k}, 0"); p.I(f"v_mov_b32 v{G+4*k+1}, s{TAG}")
            p.I(f"v_mov_b32 v{G+4*k+2}, 0"); p.I(f"v_mov_b32 v{G+4*k+3}, s{TAG}")
    def gather(b):
        for k in range(8):
            kk = 8 * b + k
            L = p.newlabel("g")
            p.I(f"""
            s_cmp_lt_u32 s34, {16-kk}
            s_cbranch_scc1 {L}
            s_cmp_ge_u32 s34, {32-kk}
            s_cselect_b32 exec_lo, -1, 0
            s_add_u32 s36, s35, {kk*10240}
            buffer_load_dwordx4 {v(G+4*k,4)}, v17, {W}, s36 offen sc1
            """)
            p.L(L)
        p.I("s_mov_b64 exec, -1")
    def check(b):
        lbl = f"{name}_poll{b}"
        p.I("s_mov_b32 s37, 0")
        p.L(lbl)
        p.I("s_waitcnt vmcnt(0)")
        for k in range(8):
            p.I(f"v_xor_b32 v12, s{TAG}, v{G+4*k+1}")
            p.I(f"v_xor_b32 v13, s{TAG}, v{G+4*k+3}")
            p.I(f"v_or_b32 v14, v12, v13" if k == 0 else f"v_or3_b32 v14, v14, v12, v13")
        p.I(f"""
        v_cmp_ne_u32 vcc, 0, v14
        s_cmp_eq_u64 vcc, 0
        s_cbranch_scc1 {lbl}_ok
        s_add_u32 s37, s37, 1
        s_cmp_gt_u32 s37, {SPIN}
        s_cbranch_scc1 {lbl}_ok
        s_sleep 6
        """)
        gather(b)
        p.I(f"s_branch {lbl}")
        p.L(lbl + "_ok")
    preset()
    for s_ in range(32):
        p.I(f"""
        v_mul_f32 v{18+(s_&1)}, v{CI}, v{RE(s_)}
        v_mul_f32 v{RE(s_)}, v{CR}, v{RE(s_)}
        v_fma_f32 v{RE(s_)}, -v{CI}, v{IM(s_)}, v{RE(s_)}
        v_fma_f32 v{IM(s_)}, v{CR}, v{IM(s_)}, v{18+(s_&1)}
        """)
        if s_ == 8: gather(0)
    cmul(p, 8, 9, L64R, L64I, L64R, L64I, 14)
    for _ in range(3): cmul(p, 8, 9, 8, 9, 8, 9, 14)
    hr, hi, nr, ni = None, None, 10, 11
    for b in range(2):
        check(b)
        for k in range(8):
            if hr is None:
                p.I(f"v_mov_b32 v4, v{G}"); p.I(f"v_mov_b32 v5, v{G+2}"); hr, hi = 4, 5; continue
            p.I(f"""
            v_fma_f32 v{nr}, v{L64R}, v{hr}, v{G+4*k}
            v_fma_f32 v{ni}, v{L64R}, v{hi}, v{G+4*k+2}
            v_fma_f32 v{nr}, -v{L64I}, v{hi}, v{nr}
            v_fma_f32 v{ni}, v{L64I}, v{hr}, v{ni}
            """)
            hr, hi, nr, ni = nr, ni, hr, hi
        if b == 0: gather(1)
    stamp(p, 4)
    p.I(f"""
    v_mov_b32 v16, v{hr}
    v_mov_b32 v17, v{hi}
    v_mov_b32 v18, v{hr}
    v_mov_b32 v19, v{hi}
    v_permlane32_swap_b32 v16, v18
    v_permlane32_swap_b32 v17, v19
    """)
    cfma(p, 10, 11, 8, 9, 16, 17, 18, 19, 14)
    cfma(p, 12, 13, L32R, L32I, 10, 11, ELR, ELI, 14)
    p.I(f"""
    v_cmp_eq_u32 vcc, 0, v{VH}
    v_cndmask_b32 v10, v12, v10, vcc
    v_cndmask_b32 v11, v13, v11, vcc
    """)
    cmul(p, 10, 11, 10, 11, CR, CI, 14)
    p.I(f"""
    s_lshl_b32 s35, s34, 3
    s_mul_i32 s35, s35, {HS}
    s_add_u32 s35, s35, {WS_H}
    v_mul_u32_u24 v16, {4*HS}, v{VH}
    v_lshl_add_u32 v16, v{VP}, 4, v16
    """)
    pr, pi = 10, 11
    for q in range(4):
        for s_ in range(8 * q, 8 * q + 8):
            p.I(f"""
            v_fma_f32 v{RE(s_)}, v{LA}, v{pr}, v{RE(s_)}
            v_fma_f32 v{IM(s_)}, v{LA}, v{pi}, v{IM(s_)}
            v_fma_f32 v{RE(s_)}, -v{LB}, v{pi}, v{RE(s_)}
            v_fma_f32 v{IM(s_)}, v{LB}, v{pr}, v{IM(s_)}
            """)
            pr, pi = RE(s_), IM(s_)
        o = FR + 8 * q
        for j in range(4):
            p.I(f"v_cvt_pk_bf16_f32 v{o+j}, v{RE(8*q+2*j)}, v{RE(8*q+2*j+1)}")
            p.I(f"v_cvt_pk_bf16_f32 v{o+4+j}, -v{IM(8*q+2*j)}, -v{IM(8*q+2*j+1)}")
        p.I(f"buffer_store_dwordx4 {v(o,4)}, v16, {W}, s35 offen sc1")
        p.I(f"s_add_u32 s35, s35, 10240")
        p.I(f"buffer_store_dwordx4 {v(o+4,4)}, v16, {W}, s35 offen sc1")
        p.I(f"s_add_u32 s35, s35, {HS-10240}")
    p.I(f"""
    s_mul_i32 s30, s12, {FST}
    s_lshl_b32 s31, s13, 4
    s_add_u32 s30, s30, s31
    s_lshl_b32 s31, s14, 2
    s_add_u32 s30, s30, s31
    s_add_u32 s30, s30, {WS_F2}
    s_waitcnt vmcnt(0)
    """)
    put_flag(p, 30, 4)
    stamp(p, 5)

def poll_flags(p, soff, nlanes, vt, st, wide=False, sleep=4, addr=None):
    L = p.newlabel("pf")
    if addr is None: p.I(f"v_lshlrev_b32 v{vt}, {4 if wide else 2}, v2")
    va = vt if addr is None else addr
    p.I(f"s_mov_b32 s{st}, 0")
    if nlanes:
        p.I(f"s_mov_b64 s[40:41], {(1 << nlanes) - 1 if nlanes < 31 else -1}")
        if 32 <= nlanes < 64: p.I(f"s_mov_b32 s41, {(1 << (nlanes - 32)) - 1:#x}")
    p.L(L)
    if wide:
        p.I(f"""
        buffer_load_dwordx4 {v(vt+2,4)}, v{va}, {W}, s{soff} offen sc1
        s_add_u32 s{st}, s{st}, 1
        s_waitcnt vmcnt(0)
        v_xor_b32 v{vt+2}, s{TAG}, v{vt+2}
        v_xor_b32 v{vt+3}, s{TAG}, v{vt+3}
        v_xor_b32 v{vt+4}, s{TAG}, v{vt+4}
        v_xor_b32 v{vt+5}, s{TAG}, v{vt+5}
        v_or3_b32 v{vt+2}, v{vt+2}, v{vt+3}, v{vt+4}
        v_or_b32 v{vt+2}, v{vt+2}, v{vt+5}
        v_cmp_ne_u32 vcc, 0, v{vt+2}
        """)
    else:
        p.I(f"""
        buffer_load_dword v{vt+2}, v{vt}, {W}, s{soff} offen sc1
        s_add_u32 s{st}, s{st}, 1
        s_waitcnt vmcnt(0)
        v_cmp_ne_u32 vcc, s{TAG}, v{vt+2}
        """)
    p.I(f"""
    s_and_b64 vcc, vcc, s[40:41]
    s_cbranch_scc0 {L}_d
    s_sleep {sleep}
    s_cmp_lt_u32 s{st}, {SPIN}
    s_cbranch_scc1 {L}
    """)
    p.L(L + "_d")

def ytile(p):
    p.I(f"""
    s_lshl_b32 s12, s70, 1
    s_and_b32 s13, s71, 1
    s_add_u32 s12, s12, s13
    s_lshr_b32 s13, s71, 1
    """)

YRS = 528
def y_final_setup(p, XA):
    p.I(f"""
    s_load_dwordx2 s[24:25], s[0:1], {KA['A_x']}
    s_load_dwordx2 s[26:27], s[0:1], {KA['Dskip']}
    v_lshrrev_b32 v{XA+4}, 5, v2
    v_and_b32 v{XA+5}, 31, v2
    s_lshl_b32 s34, s14, 4
    v_add_u32 v{XA+4}, s34, v{XA+4}
    v_mul_u32_u24 v{XA}, {YRS}, v{XA+4}
    v_lshl_add_u32 v{XA}, v{XA+5}, 4, v{XA}
    s_lshl_b32 s34, s12, 7
    v_add_u32 v{XA+4}, s34, v{XA+4}               ; t
    s_lshl_b32 s35, s13, 8
    v_lshl_add_u32 v{XA+3}, v{XA+5}, 3, s35
    v_mul_u32_u24 v{XA+1}, 1280, v{XA+4}
    v_add_u32 v{XA+1}, v{XA+1}, v{XA+3}
    v_mul_u32_u24 v{XA+2}, 5120, v{XA+4}
    v_lshl_add_u32 v{XA+2}, v{XA+3}, 1, v{XA+2}
    s_waitcnt lgkmcnt(0)
    global_load_dwordx2 {v(XA+8,2)}, v{XA+3}, s[26:27]
    """)
    srd(p, 76, 24, 2048*640*2)
    p.I(f"""
    s_waitcnt vmcnt(0)
    v_lshlrev_b32 v{XA+4}, 16, v{XA+8}
    v_and_b32 v{XA+5}, 0xffff0000, v{XA+8}
    v_lshlrev_b32 v{XA+6}, 16, v{XA+9}
    v_and_b32 v{XA+7}, 0xffff0000, v{XA+9}
    """)
def y_xload(p, XA, XR):
    for i in range(8):
        p.I(f"buffer_load_dwordx2 {v(XR+2*i,2)}, v{XA+1}, s[76:79], 0 offen" if i == 0 else f"buffer_load_dwordx2 {v(XR+2*i,2)}, v{XA+1}, s[76:79], s33 offen")
        if i < 7: p.I(f"s_mov_b32 s33, {(i+1)*2560}")
def y_final(p, XA, XR, D, t):
    p.I("s_barrier")
    for i in range(8):
        p.I(f"ds_read_b128 {v(D+4*i,4)}, v{XA} offset:{2*i*YRS}")
    p.I("s_mov_b32 s33, 0")
    for i in range(8):
        p.I(f"s_waitcnt vmcnt(7) lgkmcnt({7-i})")
        for j in range(2):
            p.I(f"v_lshlrev_b32 v{t}, 16, v{XR+2*i+j}")
            p.I(f"v_and_b32 v{t+1}, 0xffff0000, v{XR+2*i+j}")
            p.I(f"v_fmac_f32 v{D+4*i+2*j}, v{t}, v{XA+4+2*j}")
            p.I(f"v_fmac_f32 v{D+4*i+2*j+1}, v{t+1}, v{XA+5+2*j}")
        p.I(f"buffer_store_dwordx4 {v(D+4*i,4)}, v{XA+2}, {OUT}, s33 offen {os.environ.get('YST', 'sc1 nt')}")
        if i < 7: p.I(f"s_add_u32 s33, s33, {2*5120}")

def y_loader(p):
    ytile(p)
    y_final_setup(p, 116)
    p.I(f"s_load_dwordx4 s[20:23], s[0:1], {KA['Cre']}")
    p.I(f"""
    s_lshl_b32 s34, s12, 4
    s_lshl_b32 s35, s15, 2
    s_add_u32 s34, s34, s35
    s_mul_i32 s34, s34, {HS}
    s_add_u32 s34, s34, {WS_H}
    """)
    for i in range(4):
        p.I(f"v_xor_b32 v3, {i<<2}, v2")
        p.I(f"v_lshl_add_u32 v{4+i}, v3, 4, s34")
        if i: p.I(f"v_add_u32 v{4+i}, {i*(HS-1024)}, v{4+i}")
    p.I(f"""
    s_lshl_b32 s34, s13, 7
    s_lshl_b32 s35, s15, 5
    s_add_u32 s34, s34, s35
    s_mul_i32 s34, s34, 1280
    v_lshrrev_b32 v3, 5, v2
    v_bfe_u32 v12, v2, 3, 2
    v_lshl_add_u32 v3, v3, 4, v12
    v_mul_u32_u24 v3, 1280, v3
    v_add_u32 v3, s34, v3
    """)
    kc_loader_voff(p, 8, 3, 2, 4 * 1280, 12)
    p.I("s_waitcnt lgkmcnt(0)")
    srd(p, 36, 20, 640*640*2)
    srd(p, 24, 22, 640*640*2)
    p.I("s_mov_b32 s42, s38"); p.I("s_mov_b32 s43, 0x00020000")
    if CPF:
        p.I(f"""
        s_cmp_eq_u32 s15, 0
        s_cbranch_scc1 y_poll
        s_and_b32 s35, s71, 1
        s_cmp_eq_u32 s35, 0
        s_cselect_b32 s40, s36, s24
        s_cselect_b32 s41, s37, s25
        v_lshlrev_b32 v16, 7, v2
        v_mov_b32 v18, 0
        s_mul_i32 s34, s13, {128*1280}
        s_sub_u32 s35, s15, 1
        s_mul_i32 s35, s35, {13*4096}
        s_add_u32 s34, s34, s35
        """)
        for i in range(7):
            p.I(f"buffer_load_dword v17, v16, s[40:43], s34 offen")
            p.I(f"s_add_u32 s34, s34, 8192")
            p.I("s_waitcnt vmcnt(0)")
            if i < 6:
                p.I(f"s_sleep {CPF}")
                p.I(f"""
                ds_read_b32 v19, v18
                s_waitcnt lgkmcnt(0)
                v_readfirstlane_b32 s35, v19
                s_cmp_lg_u32 s35, 0
                s_cbranch_scc1 y_poll
                """)
        p.L("y_poll")
    p.I("s_cmp_lg_u32 s15, 0"); p.I("s_cbranch_scc1 y_nopoll")
    count_in(p, 16)
    p.I(f"s_mul_i32 s34, s12, {FST}"); p.I(f"s_add_u32 s34, s34, {WS_F2}")
    poll_flags(p, 34, 10, 16, 30, wide=True, sleep=6)
    p.I(f"""
    v_mov_b32 v18, 0
    v_mov_b32 v19, 1
    ds_write_b32 v18, v19
    s_waitcnt lgkmcnt(0)
    """)
    p.L("y_nopoll")
    p.I("s_barrier")
    p.I(f"""
    s_and_b32 s18, s71, 1
    s_mul_i32 s18, s18, 10
    s_lshl_b32 s19, s13, 2
    s_add_u32 s18, s18, s19
    """)
    kmod(p, 18, 20)
    p.I("s_lshl_b32 s19, s18, 7"); p.I("s_lshl_b32 s18, s18, 10")
    def issue(st, which, off):
        p.I(f"s_add_u32 m0, s33, {off}")
        if which == 0:
            for i in range(4):
                p.I(f"buffer_load_dwordx4 v{4+i}, {W}, s18 offen offset:{i*1024} lds")
            kadv(p, 18, 1024, 20)
        else:
            p.I(f"""
            s_cmp_ge_u32 s19, 1280
            s_cselect_b32 s40, s24, s36
            s_cselect_b32 s41, s25, s37
            s_cselect_b32 s32, 1280, 0
            s_sub_u32 s32, s19, s32
            """)
            for i in range(4):
                p.I(f"buffer_load_dwordx4 v{8+i}, s[40:43], s32 offen offset:{i*1024} lds")
            kadv(p, 19, 128, 20)
    EY.loader(p, issue)
    y_xload(p, 116, 20)
    y_final(p, 116, 20, 52, 5)

def y_consumer(p):
    E = EY
    AD = 4; FR = 20; ACC = 52; XA = 116
    assert AD + E.naddr() <= FR and FR + E.NB * E.fr_per <= ACC
    ytile(p)
    y_final_setup(p, XA)
    E.cons_setup(p, AD, 2, 28, 29, FR, 32)
    for i in range(64): p.I(f"v_mov_b32 v{ACC+i}, 0")
    p.I(f"""
    s_mul_i32 s32, s28, {64*YRS}
    s_lshl_b32 s33, s29, 8
    s_add_u32 s32, s32, s33
    v_and_b32 v126, 31, v2
    v_lshrrev_b32 v127, 5, v2
    v_mul_u32_u24 v126, {YRS}, v126
    v_lshl_add_u32 v126, v127, 6, v126
    v_add_u32 v126, s32, v126
    """)
    p.I(f"s_setprio {PATY[-1] if PATY else 0}")
    p.I("s_barrier")
    stamp(p, 6)
    if DIAG: p.I("s_waitcnt lgkmcnt(0)")
    E.consumer(p, AD, FR, ACC, False, 32, "y_loop")
    p.I("s_setprio 3")
    stamp(p, 7)
    y_xload(p, XA, FR)
    for t in range(2):
        for u in range(2):
            for q in range(4):
                p.I(f"ds_write_b128 v126, {v(ACC+32*t+16*u+4*q,4)} offset:{u*32*YRS+t*128+16*q}")
    p.I("s_waitcnt lgkmcnt(0)")
    y_final(p, XA, FR, ACC, 5)
    if DIAG: p.I("s_waitcnt vmcnt(0)")
    stamp(p, 8)

WOV = 98
def wo_setup(p):
    p.I(f"""
    s_load_dwordx2 s[82:83], s[0:1], {KA['wo']}
    v_lshrrev_b32 v{WOV}, 3, v2
    v_mul_u32_u24 v{WOV}, 1280, v{WOV}
    v_and_b32 v{WOV+1}, 7, v2
    v_bfe_u32 v3, v2, 4, 1
    v_lshlrev_b32 v3, 2, v3
    v_xor_b32 v{WOV+1}, v{WOV+1}, v3
    v_lshl_add_u32 v{WOV}, v{WOV+1}, 4, v{WOV}
    s_and_b32 s73, s14, 1
    s_lshl_b32 s73, s73, 5
    v_xor_b32 v{WOV}, s73, v{WOV}
    v_xor_b32 v{WOV+1}, 32, v{WOV}
    s_sub_u32 s73, s71, 12
    s_lshr_b32 s73, s73, 1
    s_lshl_b32 s73, s73, 7
    s_waitcnt lgkmcnt(0)
    """)
    srd(p, 76, 82, 640*640*2)
def wo_part(p, slot):
    p.I(f"s_mul_i32 s33, s14, {24*1280}")
    p.I(f"s_add_u32 s33, s33, s73")
    for i in range(3):
        p.I(f"s_add_u32 m0, s24, {slot*24576+i*1024}")
        p.I(f"s_add_u32 s81, s33, {(192*slot+8*i)*1280}")
        p.I(f"buffer_load_dwordx4 v{WOV+(i&1)}, s[76:79], s81 offen lds")
def att_late(p):
    if LATEC:
        p.I("s_cmp_lg_u32 s26, 6"); p.I("s_cbranch_scc1 a_l0")
        p.I("s_cmp_lg_u32 s14, 0"); p.I("s_cbranch_scc1 a_l0")
        count_in(p, 0)
        p.L("a_l0")
    p.I(f"""
    s_cmp_lt_u32 s71, 12
    s_cbranch_scc1 a_nodma2
    s_cmp_eq_u32 s26, 7
    s_cbranch_scc1 a_l2
    """)
    wo_part(p, 2)
    p.I(f"""
    s_lshl_b32 s33, s14, 10
    s_add_u32 m0, s33, {3*24576}
    s_mul_i32 s33, s14, {8*1280}
    s_add_u32 s33, s33, s73
    s_add_u32 s33, s33, {576*1280}
    buffer_load_dwordx4 v{WOV}, s[76:79], s33 offen lds
    s_branch a_nodma2
    """)
    p.L("a_l2")
    wo_part(p, 0)

FSH = int(os.environ.get("FSH", "6"))
NL = int(os.environ.get('NL', '6'))
NREP = int(os.environ.get("NREP", "1"))
F3R = (2048 << FSH) + 256
WS_F3 = 0xC00000
def outproj_tail(p):
    CW = Opnd("tr", 64)
    OF = 4; ACC = 84; WF = 116; AW = 124; AO = 126; PV_ = 127; T = 8
    def own_flag():
        p.I(f"""
        s_mov_b64 exec, {(1 << NREP) - 1}
        buffer_store_dword v1, v0, {W}, s30 offen sc1
        s_mov_b64 exec, -1
        """)
    p.I(f"""
    s_mov_b64 exec, -1
    s_lshl_b32 s33, s13, 3
    s_lshl_b32 s34, s15, 1
    s_add_u32 s33, s33, s34
    s_add_u32 s33, s33, s16
    s_lshl_b32 s33, s33, 5
    s_add_u32 s33, s33, s12
    s_lshl_b32 s33, s33, {FSH}
    s_add_u32 s30, s33, {WS_F3}
    v_mul_u32_u24 v0, {F3R}, v2
    v_mov_b32 v1, s{TAG}
    s_cmp_ge_u32 s71, 12
    s_cbranch_scc1 o_go
    s_waitcnt vmcnt(0)
    """)
    own_flag()
    stamp(p, 8)
    stamp_flush(p, 12, 8, 14, kidx=0)
    p.I("s_endpgm")
    p.L("o_go")
    p.I(f"""
    s_sub_u32 s31, s71, 12
    s_and_b32 s17, s31, 1
    s_lshr_b32 s18, s31, 1
    s_lshl_b32 s33, s70, 1
    s_add_u32 s17, s17, s33
    s_barrier
    """)
    wo_part(p, 1)
    ACC = 84; WF = 100; AW = 116; AO = 124; PV_ = 125; OA_ = 126
    p.I(f"""
    v_lshrrev_b32 v{T}, 4, v2                     ; g
    v_bfe_u32 v{T+1}, v2, 2, 2                    ; r
    v_lshl_add_u32 v{T+2}, v{T}, 3, v{T+1}        ; 8g + r
    v_lshlrev_b32 v{T+2}, 7, v{T+2}
    v_and_b32 v{T+3}, 3, v2
    v_lshl_add_u32 v{T+2}, v{T+3}, 3, v{T+2}      ; + c*8
    v_and_b32 v{T+1}, 2, v{T+1}
    v_and_b32 v{T+3}, 1, v{T}
    v_or_b32 v{T+1}, v{T+1}, v{T+3}               ; z
    v_lshl_add_u32 v{AW}, v{T+1}, 5, v{T+2}
    v_xor_b32 v{AW+1}, 32, v{AW}
    v_xor_b32 v{AW+2}, 64, v{AW}
    v_xor_b32 v{AW+3}, 96, v{AW}
    v_add_u32 v{AW+4}, 0x8000, v{AW}
    v_add_u32 v{AW+5}, 0x8000, v{AW+1}
    v_add_u32 v{AW+6}, 0x8000, v{AW+2}
    v_add_u32 v{AW+7}, 0x8000, v{AW+3}
    v_and_b32 v{T+1}, 15, v2
    v_mul_u32_u24 v{AO}, {OPS}, v{T}
    v_lshl_add_u32 v{AO}, v{T+1}, 4, v{AO}
    s_mul_i32 s33, s17, {16*NL}
    s_add_u32 s33, s33, {2048-256*NL}
    s_mul_i32 s34, s17, {16*(8-NL)}
    s_sub_u32 s34, s34, {16*NL}
    s_cmp_lt_u32 s14, {NL}
    s_cselect_b32 s33, s33, s34
    s_lshl_b32 s34, s14, 4
    s_add_u32 s33, s33, s34
    v_add_u32 v{T+1}, s33, v{T+1}
    v_mul_u32_u24 v{OA_}, 5120, v{T+1}
    v_lshl_add_u32 v{OA_}, v{T}, 4, v{OA_}
    s_lshl_b32 s22, s33, 4
    s_add_u32 s22, s22, {WS_O}
    s_lshr_b32 s33, s33, 5
    s_lshl_b32 s33, s33, {FSH+5}
    s_and_b32 s34, s18, {NREP-1}
    s_mul_i32 s34, s34, {F3R}
    s_add_u32 s33, s33, s34
    s_add_u32 s25, s33, {WS_F3}
    v_and_b32 v3, 31, v2
    v_lshlrev_b32 v3, {FSH}, v3
    buffer_load_dword v{PV_}, v3, {W}, s25 offen sc1
    s_mov_b32 s26, 0x01010101
    s_mov_b32 s27, 0
    s_mov_b32 s37, 0
    s_mov_b32 s36, 0
    s_mov_b32 s35, 0
    """)
    for i in range(16): p.I(f"v_mov_b32 v{ACC+i}, 0")
    p.I("s_waitcnt vmcnt(4)")
    own_flag()
    stamp(p, 8)
    if DIAG: p.I("s_waitcnt lgkmcnt(0)")
    p.I("s_waitcnt vmcnt(2)")
    p.I("s_barrier")
    if os.environ.get("TST"):
        stamp(p, 10); p.I("s_waitcnt lgkmcnt(0)")
    p.I("s_waitcnt vmcnt(1)")
    p.I("s_branch o_eval")
    def wread(step, t):
        hi = step >= 15
        for jh in range(2):
            p.I(f"ds_read_b64_tr_b16 {v(WF+4*t+2*jh,2)}, v{AW+t+4*hi} offset:{step*4096+jh*512-0x8000*hi}")
    p.L("o_loop")
    p.I(f"""
    s_mov_b32 s35, s27
    s_cmp_eq_u32 s26, 0
    s_cselect_b32 s36, 1, 0
    s_cbranch_scc1 o_cmp
    s_waitcnt vmcnt(0)
    """)
    p.L("o_eval")
    p.I(f"""
    v_cmp_ne_u32 vcc, s{TAG}, v{PV_}
    s_add_u32 s37, s37, 1
    s_lshr_b32 s33, vcc_lo, 1
    s_or_b32 s33, s33, vcc_lo
    s_lshr_b32 s34, s33, 2
    s_or_b32 s33, s33, s34
    s_lshr_b32 s34, s33, 4
    s_or_b32 s33, s33, s34
    s_cmp_gt_u32 s37, {SPIN}
    s_cselect_b32 s33, 0, s33
    s_andn2_b32 s27, s26, s33
    s_andn2_b32 s26, s26, s27
    s_or_b32 s33, s27, s35
    s_cbranch_scc1 o_ns
    s_sleep {os.environ.get("OPI", "3")}
    """)
    p.L("o_ns")
    for g in range(4):
        L = f"o_i{g}"
        p.I(f"s_bitcmp1_b32 s27, {8*g}"); p.I(f"s_cbranch_scc0 {L}")
        for i in range(5):
            p.I(f"s_add_u32 s23, s22, {(5*g+i)*4*OPS}")
            p.I(f"buffer_load_dwordx4 {v(OF+20*g+4*i,4)}, v{AO}, {W}, s23 offen")
        p.L(L)
    p.I("s_cmp_eq_u32 s26, 0"); p.I("s_cbranch_scc1 o_np")
    p.I(f"buffer_load_dword v{PV_}, v3, {W}, s25 offen sc1")
    p.L("o_np")
    if os.environ.get("TST"):
        stamp(p, 1); p.I("s_waitcnt lgkmcnt(0)")
    p.L("o_cmp")
    for g in range(4):
        L = f"o_c{g}"
        p.I(f"s_bitcmp1_b32 s35, {8*g}"); p.I(f"s_cbranch_scc0 {L}")
        for t in range(4): wread(5 * g, t)
        p.I("s_cmp_eq_u32 s36, 0"); p.I(f"s_cbranch_scc1 {L}w")
        if g < 3:
            p.I(f"s_lshr_b32 s33, s35, {8*g+8}"); p.I("s_bcnt1_i32_b32 s33, s33")
            for n in range(3 - g, 0, -1):
                p.I(f"s_waitcnt vmcnt({5*n})")
                p.I(f"s_cmp_eq_u32 s33, {n}"); p.I(f"s_cbranch_scc1 {L}w")
        p.I("s_waitcnt vmcnt(0)")
        p.L(L + "w")
        for i in range(5):
            for t in range(4):
                p.I(f"s_waitcnt lgkmcnt({6 if i < 4 else 6-2*t})")
                d = ACC + 4 * t
                p.I(f"v_mfma_f32_16x16x32_bf16 {v(d,4)}, {v(WF+4*t,4)}, {v(OF+20*g+4*i,4)}, {v(d,4)}")
                if i < 4: wread(5 * g + i + 1, t)
        p.L(L)
    p.I("s_cmp_eq_u32 s36, 0"); p.I("s_cbranch_scc1 o_loop")
    p.L("o_done")
    stamp(p, 9)
    if os.environ.get("TST"):
        p.I("s_waitcnt lgkmcnt(0)"); p.I(f"s_mov_b32 s{ST0+10}, s37"); p.I(f"s_mov_b32 s{ST0+12}, s27")
    p.I(f"""
    s_lshl_b32 s33, s18, 8
    s_add_u32 s33, s33, 2560
    s_nop 7
    """)
    for t in range(4):
        p.I(f"buffer_store_dwordx4 {v(ACC+4*t,4)}, v{OA_}, {OUT}, s33 offen offset:{64*t} {os.environ.get('OST', 'sc1 nt')}")
    if DIAG: p.I("s_waitcnt vmcnt(0)")
    stamp(p, 11)
    stamp_flush(p, 12, 8, 14, kidx=0)
    p.I("s_endpgm")

def gen_f3(p, name=NAME + "_kernel"):
    p.R(f".p2align 8\n.type {name},@function")
    p.L(name)
    if DIAG:
        for i in range(1, 12): p.I(f"s_mov_b32 s{ST0+2*i}, 0")
    stamp(p, 0)
    p.I(f"""
    s_load_dwordx4 s[88:91], s[0:1], {KA['out']}
    s_load_dwordx2 s[4:5], s[0:1], {KA['ws']}
    s_cmp_ge_u32 s2, 512
    s_cbranch_scc1 m_exit
    v_lshrrev_b32 v1, 6, v0
    v_and_b32 v2, 63, v0
    v_readfirstlane_b32 s14, v1
    """)
    if os.environ.get("SCR"):
        p.I("""
        s_and_b32 s70, s2, 7
        s_lshl_b32 s70, s70, 3
        s_bfe_u32 s71, s2, 0x30003
        s_or_b32 s70, s70, s71
        s_andn2_b32 s2, s2, 63
        s_or_b32 s2, s2, s70
        """)
    if os.environ.get("SCR2"):
        p.I("""
        s_bfe_u32 s71, s2, 0x30003
        s_xor_b32 s2, s2, s71
        s_lshr_b32 s71, s2, 6
        s_mul_i32 s71, s71, 3
        s_and_b32 s71, s71, 7
        s_xor_b32 s2, s2, s71
        s_lshr_b32 s71, s2, 8
        s_lshl_b32 s71, s71, 5
        s_xor_b32 s2, s2, s71
        """)
    p.I(f"""
    s_and_b32 s70, s2, 7
    s_bfe_u32 s71, s2, 0x50003
    s_and_b32 s15, s14, 3
    s_lshl_b32 s33, s15, 12
    s_and_b32 s28, s14, 1
    s_lshr_b32 s29, s15, 1
    s_cmp_ge_u32 s2, 256
    s_cbranch_scc1 m_s
    s_setprio {os.environ.get('QPRIO', '3')}
    s_mov_b32 s81, 0
    v_mov_b32 v16, 0
    s_and_b32 s30, s70, 1
    s_mul_i32 s31, s71, 43
    s_lshr_b32 s31, s31, 7           ; j/3
    s_mul_i32 s32, s31, 3
    s_sub_u32 s17, s71, s32          ; j%3
    s_mul_i32 s12, s30, 3
    s_add_u32 s12, s12, s17
    s_cmp_lt_u32 s71, 12
    s_cbranch_scc1 m_tm
    s_sub_u32 s32, s71, 12
    s_mul_i32 s31, s32, 52
    s_lshr_b32 s31, s31, 8           ; jj/5
    s_mul_i32 s34, s31, 5
    s_sub_u32 s17, s32, s34          ; jj%5
    s_mul_i32 s12, s30, 5
    s_add_u32 s12, s12, s17
    s_add_u32 s12, s12, 6
    s_add_u32 s17, s17, 3
    """)
    p.L("m_tm")
    p.I(f"""
    s_lshr_b32 s13, s70, 1
    s_lshl_b32 s13, s13, 2
    s_add_u32 s13, s13, s31          ; n tile
    s_mul_i32 s31, s31, 5
    s_add_u32 s31, s31, 1
    s_lshr_b32 s31, s31, 1
    s_add_u32 s17, s17, s31          ; k rotation
    s_cmp_eq_u32 s13, 15
    s_cbranch_scc1 m_noq
    s_cmp_lt_u32 s14, 4
    s_cbranch_scc1 m_qc
    """)
    def descs():
        srd(p, 8, 4, WS_SIZE); srd(p, 92, 88, OUT_BYTES); srd(p, 84, 90, 256)
    def tagload():
        p.I(f"""
        s_waitcnt lgkmcnt(0)
        s_add_u32 s6, s4, {WS_EP}
        s_addc_u32 s7, s5, 0
        s_load_dword s{TAG}, s[6:7], 0
        """)
    qkv_loader(p)
    descs()
    p.I("s_branch m_att")
    p.L("m_qc")
    tagload(); descs()
    qkv_consumer(p)
    p.I("s_branch m_att")
    p.L("m_noq")
    p.I(f"s_load_dwordx4 s[24:27], s[0:1], {KA['B_x']}")
    tagload(); descs()
    if PFA == 1:
        p.I("s_cmp_lt_u32 s14, 4"); p.I("s_cbranch_scc1 m_noq2")
        pf_qkv(p, "pfc", 15, 16, 17)
        if PFB == 2: vpf_front(p)
        p.L("m_noq2")
    p.I(f"""
    s_waitcnt vmcnt(0) lgkmcnt(0)
    s_add_u32 s{TAG}, s{TAG}, 1
    s_sleep 100
    """)
    p.L("m_att")
    def att_wait():
        wo_setup(p)
        p.I(f"""
        s_cmp_lg_u32 s14, 0
        s_cbranch_scc1 a_wait
        s_mul_i32 s33, s12, 20
        s_lshr_b32 s34, s33, 6
        s_add_u32 s33, s33, 19
        s_lshr_b32 s33, s33, 6
        s_cmp_eq_u32 s33, s34
        s_cselect_b32 s33, 1, 0x101      ; w lanes
        s_lshl_b32 s40, s33, s13
        s_mul_i32 s41, s33, 0xff
        s_lshl_b32 s34, s41, 16
        s_or_b32 s40, s40, s34
        s_mul_i32 s72, s12, {FST}
        s_add_u32 s72, s72, {WS_F1}
        """)
        if int(os.environ.get("PD", "0")): p.I(f"s_sleep {os.environ['PD']}")
        poll_flags(p, 72, 0, 120, 33, wide=True, sleep=int(os.environ.get("PI", "2")))
        p.L("a_wait")
        p.I("s_barrier")
    def att_post():
        p.I("s_cmp_lg_u32 s14, 0"); p.I("s_cbranch_scc1 a_nocount")
        count_in(p, 0)
        p.L("a_nocount")
    def xor_or():
        p.I(f"""
        v_xor_b32 v116, s{TAG}, v116
        v_xor_b32 v117, s{TAG}, v117
        v_xor_b32 v118, s{TAG}, v118
        v_xor_b32 v119, s{TAG}, v119
        v_or3_b32 v116, v116, v117, v118
        v_or_b32 v116, v116, v119
        v_cmp_ne_u32 vcc, 0, v116
        """)
    def att_fast(first_dma):
        p.I("s_cmp_eq_u32 s81, 0"); p.I("s_cbranch_scc1 a_nopub")
        q_publish(p)
        p.L("a_nopub")
        wo_setup(p)
        p.I(f"""
        s_mov_b32 s38, 0
        s_cmp_lg_u32 s14, 4
        s_cbranch_scc1 a_wait
        s_mul_i32 s33, s12, 20
        s_lshr_b32 s34, s33, 6
        s_add_u32 s33, s33, 19
        s_lshr_b32 s33, s33, 6
        s_cmp_eq_u32 s33, s34
        s_cselect_b32 s33, 1, 0x101      ; w lanes
        s_lshl_b32 s42, s33, s13
        s_mul_i32 s75, s33, 0xff
        s_lshl_b32 s74, s75, 16
        s_mul_i32 s72, s12, {FST}
        s_add_u32 s72, s72, {WS_F1}
        s_mov_b32 s38, 1
        s_mov_b32 s43, 0
        """)
        if int(os.environ.get("PD", "0")): p.I(f"s_sleep {os.environ['PD']}")
        p.L("a_fp")
        p.I(f"""
        buffer_load_dwordx4 v[116:119], v111, {W}, s72 offen sc1
        s_add_u32 s43, s43, 1
        s_waitcnt vmcnt(0)
        """)
        xor_or()
        p.I(f"""
        s_and_b64 s[40:41], vcc, s[74:75]
        s_lshr_b32 s40, s40, 16
        s_or_b32 s40, s40, s41
        s_lshr_b32 s41, s40, 8
        s_or_b32 s40, s40, s41
        s_andn2_b32 s40, 0xff, s40
        s_lshr_b32 s41, s40, 1
        s_lshl_b32 s33, s40, 7
        s_or_b32 s41, s41, s33
        s_and_b32 s40, s40, s41
        s_ff1_i32_b32 s68, s40
        s_and_b32 s41, vcc_lo, s42
        s_cselect_b32 s40, 0, s40
        s_cmp_lg_u32 s40, 0
        s_cbranch_scc1 a_fp_d
        s_sleep {os.environ.get("PI", "2")}
        s_cmp_lt_u32 s43, {SPIN}
        s_cbranch_scc1 a_fp
        """)
        p.L("a_fp_d")
        p.I("s_and_b32 s68, s68, 7")
        first_dma()
        p.L("a_wait")
        p.I("s_barrier")
    def b_issue():
        p.I("s_cmp_lg_u32 s38, 0"); p.I("s_cbranch_scc1 a_bi"); p.L("a_nb1")
    def b_check():
        p.I("s_cmp_eq_u32 s38, 0"); p.I("s_cbranch_scc0 a_bchk"); p.L("a_bok")
    if FAST:
        k2_attn.attn_body(p, "a", fast=att_fast, post=None if LATEC else att_post, kidx=0, tail=outproj_tail, late=att_late, b_issue=b_issue, b_check=b_check)
        p.L("a_bi")
        p.I(f"""
        s_cmp_ge_u32 s26, 6
        s_cselect_b32 s38, 0, s38
        s_cbranch_scc1 a_nb1
        buffer_load_dwordx4 v[116:119], v111, {W}, s72 offen sc1
        s_branch a_nb1
        """)
        p.L("a_bchk")
        xor_or()
        p.I(f"""
        s_and_b32 s41, s75, 0x101
        s_lshl_b32 s41, s41, s68
        s_lshl_b32 s40, s41, 16
        s_and_b64 s[42:43], vcc, s[74:75]
        s_cselect_b32 s38, 1, 0
        s_and_b64 vcc, vcc, s[40:41]
        s_cbranch_scc0 a_bok
        """)
        poll_flags(p, 72, 0, 114, 33, wide=True, sleep=1, addr=111)
        p.I("s_branch a_bok")
    else:
        k2_attn.attn_body(p, "a", wait=att_wait, post=att_post, kidx=0, tail=outproj_tail, late=att_late)
    p.L("m_s")
    p.I(f"s_setprio {os.environ.get('SPRIO', '0')}")
    p.I("s_cmp_lt_u32 s71, 12"); p.I("s_cbranch_scc1 m_sy")
    p.I("s_cmp_ge_u32 s14, 4"); p.I("s_cbranch_scc1 l_bu"); p.I("s_branch c_bu")
    p.L("m_sy")
    if PFB == 1:
        p.I("s_cmp_lt_u32 s14, 4"); p.I("s_cbranch_scc1 m_s2")
        vpf_front(p)
        p.L("m_s2")
    tagload(); descs()
    p.I(f"""
    v_mov_b32 v4, 0
    ds_write_b32 v4, v4
    s_waitcnt lgkmcnt(0)
    s_add_u32 s{TAG}, s{TAG}, 1
    s_barrier
    """)
    p.I(f"""
    s_and_b32 s30, s71, 30
    s_cmp_eq_u32 s30, 10
    s_cbranch_scc1 s_idle
    s_cmp_lt_u32 s14, 4
    s_cbranch_scc1 c_y
    """)
    for _ in range(int(os.environ.get('YN', '3'))): p.I(f"s_sleep {os.environ.get('YS', '110')}")
    p.I("s_branch l_y")
    p.L("l_bu")
    bud = int(os.environ.get("BUD", "0"))
    while bud > 0:
        p.I(f"s_sleep {min(bud, 127)}"); bud -= 127
    buq = int(os.environ.get("BUQ", "0"))
    if buq:
        p.I(f"""
        s_sub_u32 s30, s71, 12
        s_mul_i32 s30, s30, 52
        s_lshr_b32 s30, s30, 8
        s_lshr_b32 s31, s70, 1
        s_lshl_b32 s31, s31, 2
        s_add_u32 s30, s30, s31
        s_cmp_ge_u32 s30, {os.environ.get("NQ", "5")}
        s_cbranch_scc1 l_bu2
        """)
        while buq > 0:
            p.I(f"s_sleep {min(buq, 127)}"); buq -= 127
        p.L("l_bu2")
    bu_loader(p, None)
    p.I("s_endpgm")
    p.L("l_y")
    p.I("s_setprio 3")
    p.I("s_waitcnt vmcnt(0)")
    y_loader(p)
    p.I("s_endpgm")
    p.L("c_bu")
    def bu_mid():
        tagload(); descs()
    bu_consumer(p, bu_mid)
    p.I("s_cmp_lg_u32 s14, 0"); p.I("s_cbranch_scc1 b_nc")
    count_in(p, 126)
    p.L("b_nc")
    p.I("s_branch c_end")
    p.L("c_y")
    y_consumer(p)
    p.L("c_end")
    p.I(f"""
    s_cmp_lg_u32 s14, 0
    s_cbranch_scc1 c_fin
    s_cmp_lg_u32 s2, 511
    s_cbranch_scc1 c_fin
    s_mov_b32 s30, 0
    v_mov_b32 v4, 0
    """)
    p.L("c_ep")
    p.I(f"""
    buffer_load_dword v5, v4, {DBG}, 0 offen sc1
    s_add_u32 s30, s30, 1
    s_waitcnt vmcnt(0)
    v_readfirstlane_b32 s31, v5
    s_cmp_ge_u32 s31, 512
    s_cbranch_scc1 c_ep_d
    s_sleep 40
    s_cmp_lt_u32 s30, {SPIN}
    s_cbranch_scc1 c_ep
    """)
    p.L("c_ep_d")
    p.I(f"s_mov_b32 s30, {WS_EP}")
    put_flag(p, 30, 4)
    p.L("c_fin")
    stamp_flush(p, 11, 8, 14, kidx=0)
    p.I("s_endpgm")
    p.L("s_idle")
    def code_touch(tag):
        p.I(f"""
        s_getpc_b64 s[30:31]
        """)
        p.L(f"ct_{tag}")
        p.I(f"""
        s_sub_u32 s30, s30, ct_{tag}-{name}
        s_subb_u32 s31, s31, 0
        v_lshlrev_b32 v18, 7, v0
        v_min_u32 v18, m_exit-{name}, v18
        v_mov_b32 v19, s31
        v_add_co_u32 v18, vcc, s30, v18
        v_addc_co_u32 v19, vcc, 0, v19, vcc
        global_load_dword v20, v[18:19], off
        s_waitcnt vmcnt(0)
        """)
    CT = int(os.environ.get("CT", "3"))
    if CT & 1:
        p.I("s_bitcmp1_b32 s71, 0"); p.I("s_cbranch_scc1 ct_skip")
        code_touch("a")
        p.L("ct_skip")
    WPF = int(os.environ.get("WPF", "5"))
    if WPF:
        p.I(f"""
        s_load_dwordx2 s[20:21], s[0:1], {KA['wo']}
        v_lshlrev_b32 v16, 7, v2
        s_sub_u32 s34, s2, 336
        s_lshl_b32 s34, s34, 3
        s_add_u32 s34, s34, s14
        s_mul_i32 s34, s34, {50*128}
        s_waitcnt lgkmcnt(0)
        """)
        srd(p, 36, 20, 640*640*2)
        for _ in range(WPF): p.I("s_sleep 110")
        p.I("s_mov_b32 exec_hi, 0x3ffff")
        p.I(f"buffer_load_dword v17, v16, s[36:39], s34 offen")
        p.I("s_mov_b64 exec, -1")
        p.I("s_waitcnt vmcnt(0)")
    p.I("s_cmp_lg_u32 s14, 0"); p.I("s_cbranch_scc1 i_nc")
    count_in(p, 4)
    p.L("i_nc")
    if CT & 2:
        p.I("s_bitcmp1_b32 s71, 0"); p.I("s_cbranch_scc0 m_exit")
        code_touch("b")
    p.L("m_exit")
    p.I("s_endpgm")
    return dict(name=name, grid=512, block=512, lds=81920, vgpr=128)
```

```python
from common import *
import struct, math
CSCALE = struct.unpack("<I", struct.pack("<f", math.log2(math.e) / math.sqrt(20.0)))[0]
SLOT = 24576
PRIOS = eval(os.environ.get('PRIOS', '{}'))
BPH = int(os.environ.get('BPH', '4'))
MPOS = eval(os.environ.get('MPOS', 'None'))
NCH = 8

QF = 4
OA = 20
SX = 52
PP = 84
K1 = 92
K2 = 96
VA = 100
VB = 104
AK1, AK2, AV, VOFF = 108, 109, 110, 111
T0 = 112

def attn_body(p, name, WSRD=8, wait=None, post=None, kidx=1, b_issue=None, b_check=None, tail=None, early_wait=False, late=None, setup2=None, fast=None):
    W = f"s[{WSRD}:{WSRD+3}]"
    p.I(f"""
    s_and_b32 s12, s2, 7
    s_bfe_u32 s13, s2, 0x50003
    s_lshl_b32 s12, s12, 2
    s_and_b32 s17, s13, 3
    s_add_u32 s12, s12, s17           ; head
    s_lshr_b32 s13, s13, 2            ; q block
    s_and_b32 s15, s14, 3             ; qg
    s_lshr_b32 s16, s14, 2            ; kh
    s_lshr_b32 s28, s12, 1            ; hp
    s_and_b32 s29, s12, 1             ; odd
    s_mul_i32 s30, s28, 5             ; 5hp
    s_mul_i32 s31, s29, 3
    s_add_u32 s31, s31, s30
    s_add_u32 s30, s30, 2
    v_lshlrev_b32 v{VOFF}, 4, v2      ; lane*16
    s_mul_i32 s24, s14, 3072          ; m0 base
    s_cmp_ge_u32 s14, 4
    s_cbranch_scc1 {name}_vsrc
    """)
    for i in range(3):
        p.I(f"""
        s_mul_i32 s33, s14, 3
        s_add_u32 s33, s33, {i}
        s_lshr_b32 s34, s33, 2
        s_and_b32 s33, s33, 3
        s_add_u32 s35, s31, s34
        s_cmp_eq_u32 s34, 2
        s_cselect_b32 s35, s30, s35
        s_add_u32 s35, s35, 80
        s_lshl_b32 s35, s35, 15
        s_lshl_b32 s33, s33, 10
        s_add_u32 s35, s35, s33
        s_add_u32 s{20+i}, s35, {WS_QK - i*1024}
        """)
    p.I(f"""
    s_movk_i32 s23, 4096
    s_branch {name}_srcdone
    """)
    p.L(f"{name}_vsrc")
    p.I(f"""
    s_mul_i32 s33, s12, 81920
    s_add_u32 s33, s33, s24
    s_add_u32 s20, s33, {WS_V - 12*1024}
    s_cmp_eq_u32 s14, 7
    s_cselect_b32 s33, 1024, 0
    s_sub_u32 s21, s20, s33
    s_sub_u32 s22, s21, s33
    s_movk_i32 s23, 10240
    """)
    p.L(f"{name}_srcdone")
    def dma(slot_sgpr_or_imm):
        p.I(f"s_add_u32 m0, s24, {slot_sgpr_or_imm}")
        for i in range(3):
            p.I(f"buffer_load_dwordx4 v{VOFF}, {W}, s{20+i} offen offset:{i*1024} lds")
        if fast:
            p.I("s_add_u32 s68, s68, 1"); p.I("s_and_b32 s68, s68, 7"); p.I("s_cselect_b32 s33, s23, s69")
        for i in range(3):
            p.I(f"s_add_u32 s{20+i}, s{20+i}, {'s33' if fast else 's23'}")
    p.I(f"""
    v_and_b32 v{T0}, 31, v2
    v_lshrrev_b32 v{T0+1}, 5, v2          ; h
    s_lshl_b32 s33, s13, 8
    s_lshl_b32 s34, s15, 6
    s_add_u32 s33, s33, s34
    s_lshl_b32 s33, s33, 4
    v_lshl_add_u32 v{T0+2}, v{T0}, 4, s33         ; token*16
    v_mul_u32_u24 v{T0+3}, {OPS if fast else 32768}, v{T0+1}
    v_add_u32 v{T0+3}, v{T0+3}, v{T0+2}
    s_lshl_b32 s32, s31, 15
    s_mul_i32 s35, s30, {OPS if fast else 32768}
    s_lshl_b32 s36, s29, 3
    s_add_u32 s35, s35, s36
    s_lshl_b32 s33, s16, 11
    v_lshlrev_b32 v{AK1}, 12, v{T0+1}              ; h*4096
    v_lshl_add_u32 v{AK1}, v{T0}, 4, v{AK1}
    v_add_u32 v{AK1}, s33, v{AK1}
    s_add_u32 s34, s33, s36
    s_add_u32 s34, s34, 8192
    v_add_u32 v{AK2}, s34, v{VOFF}
    s_mul_i32 s33, s16, 5120
    s_add_u32 s33, s33, 12288
    v_mul_u32_u24 v{AV}, 320, v{T0+1}
    v_lshl_add_u32 v{AV}, v{T0}, 4, v{AV}
    v_add_u32 v{AV}, s33, v{AV}
    s_mov_b32 s18, 0x000fffff
    s_mov_b32 s19, 0x000fffff
    v_mov_b32 v{T0+4}, 0x3f803f80
    v_cmp_eq_u32 vcc, 20, v{T0}
    v_cndmask_b32 v{T0+5}, 0, v{T0+4}, vcc
    """)
    def inits():
        for i in range(8): p.I(f"v_mov_b32 v{VA+i}, v{T0+5}")
        for i in range(32): p.I(f"v_mov_b32 v{OA+i}, 0")
        for i in range(8): p.I(f"v_mov_b32 v{PP+i}, 0")
        for i in range(4): p.I(f"v_mov_b32 v{SX+28+i}, 0")
    if not early_wait: inits()
    if fast:
        def first_dma():
            p.I(f"s_lshl_b32 s33, s13, 12")
            p.I(f"s_lshl_b32 s34, s68, 12")
            for pc in range(3):
                p.I(f"s_add_u32 s37, s31, {pc}" if pc < 2 else "s_mov_b32 s37, s30")
                p.I(f"s_lshl_b32 s37, s37, 15")
                p.I(f"s_add_u32 s39, s37, s33")
                p.I(f"s_mov_b32 m0, {2*SLOT+pc*4096}")
                for i in range(4): p.I(f"buffer_load_dwordx4 v{VOFF}, {W}, s39 offen offset:{i*1024} lds")
                p.I(f"s_add_u32 s39, s37, s34")
                p.I(f"s_add_u32 s39, s39, {80*32768}")
                p.I(f"s_mov_b32 m0, {pc*4096}")
                for i in range(4): p.I(f"buffer_load_dwordx4 v{VOFF}, {W}, s39 offen offset:{i*1024} lds")
            p.I(f"s_mul_i32 s39, s12, 81920"); p.I(f"s_mul_i32 s34, s68, 10240")
            p.I(f"s_add_u32 s39, s39, s34"); p.I(f"s_add_u32 s39, s39, {WS_V}")
            for g in range(3):
                p.I(f"s_mov_b32 m0, {12288+g*4096}")
                for i in range(4 if g < 2 else 2): p.I(f"buffer_load_dwordx4 v{VOFF}, {W}, s39 offen offset:{i*1024} lds")
                if g < 2: p.I("s_add_u32 s39, s39, 4096")
            p.I(f"""
            v_mov_b32 v{T0+6}, {3*SLOT}
            v_mov_b32 v{T0+7}, s68
            ds_write_b32 v{T0+6}, v{T0+7}
            s_waitcnt vmcnt(0) lgkmcnt(0)
            """)
        p.I(f"""
        s_lshl_b32 s33, s15, 10
        s_add_u32 s33, s33, {2*SLOT}
        v_lshl_add_u32 v{K1}, v{T0}, 4, s33
        v_lshl_add_u32 v{K1+1}, v{T0+1}, 12, v{K1}
        v_add_u32 v{K1}, s36, v{K1}
        v_mov_b32 v{K1+2}, {3*SLOT}
        s_mul_i32 s69, s23, -7
        """)
        fast(first_dma)
        stamp(p, 7)
        if DIAG: p.I("s_waitcnt lgkmcnt(0)")
        p.I(f"ds_read_b32 v{K1+3}, v{K1+2}")
        for x in range(2):
            p.I(f"ds_read_b128 {v(SX+8*x,4)}, v{K1+1} offset:{512*x}")
            p.I(f"ds_read_b64 {v(SX+8*x+4,2)}, v{K1} offset:{8192+512*x}")
        p.I(f"""
        s_waitcnt lgkmcnt(4)
        v_readfirstlane_b32 s68, v{K1+3}
        s_add_u32 s68, s68, 1
        s_and_b32 s68, s68, 7
        s_mul_i32 s33, s68, s23
        s_add_u32 s20, s20, s33
        s_add_u32 s21, s21, s33
        s_add_u32 s22, s22, s33
        """)
        dma(SLOT)
    else:
        if wait: wait()
        stamp(p, 7)
        for x in range(2):
            p.I(f"buffer_load_dwordx4 {v(SX+8*x,4)}, v{T0+3}, {W}, s32 offen offset:{512*x}")
            p.I(f"buffer_load_dwordx2 {v(SX+8*x+4,2)}, v{T0+2}, {W}, s35 offen offset:{512*x}")
        dma(0)
        dma(SLOT)
    if early_wait: inits()
    if setup2: setup2()
    p.I(f"s_mov_b32 s33, {CSCALE:#x}")
    p.I(f"v_cmp_eq_u32 vcc, 0, v{T0+1}")
    p.I("s_waitcnt lgkmcnt(0)" if fast else "s_waitcnt vmcnt(6)")
    for x in range(2):
        for j in range(6):
            src = SX + 8 * x + j
            p.I(f"""
            v_lshlrev_b32 v{T0+6}, 16, v{src}
            v_and_b32 v{T0+7}, 0xffff0000, v{src}
            v_mul_f32 v{T0+6}, s33, v{T0+6}
            v_mul_f32 v{T0+7}, s33, v{T0+7}
            """)
            if j < 4:
                p.I(f"v_cvt_pk_bf16_f32 v{QF+8*x+j}, v{T0+6}, v{T0+7}")
            else:
                p.I(f"""
                v_cvt_pk_bf16_f32 v{T0+6}, v{T0+6}, v{T0+7}
                v_cndmask_b32 v{QF+8*x+j}, 0, v{T0+6}, vcc
                v_cndmask_b32 v{QF+8*x+j+2}, v{T0+6}, 0, vcc
                """)
    if DIAG: p.I("s_waitcnt lgkmcnt(0)")
    if not fast:
        p.I("s_waitcnt vmcnt(3)")
        p.I("s_barrier")
    if post: post()
    def rdK1(kt): return [f"ds_read_b128 {v(K1,4)}, v{AK1} offset:{kt*512}"]
    def rdK2(u): return [f"ds_read_b64 {v(K2,2)}, v{AK2} offset:{u*1024}"]
    def rdV(reg, kt, aa): return ["s_mov_b64 exec, s[18:19]", f"ds_read_b128 {v(reg,4)}, v{AV} offset:{kt*1280+aa*640}", "s_mov_b64 exec, -1"]
    def QK1(S, x): return f"v_mfma_f32_32x32x16_bf16 {v(S,16)}, {v(K1,4)}, {v(QF+8*x,4)}, 0"
    def QK2(S, x, par): return f"v_mfma_f32_32x32x8_bf16 {v(S,16)}, {v(K2,2)}, {v(QF+8*x+4+2*par,2)}, {v(S,16)}"
    def PV(x, aa): return f"v_mfma_f32_32x32x16_bf16 {v(OA+16*x,16)}, {v(VB if aa else VA,4)}, {v(PP+4*aa,4)}, {v(OA+16*x,16)}"
    if MPOS:
        PQ = 120
        def Pb(ph): return PP if ph % 2 == 0 else PQ
        def PV2(x, aa, pb): return f"v_mfma_f32_32x32x16_bf16 {v(OA+16*x,16)}, {v(VB if aa else VA,4)}, {v(pb+4*aa,4)}, {v(OA+16*x,16)}"
        for i in range(8): p.I(f"v_mov_b32 v{PQ+i}, 0")
        for r in rdK1(0) + rdK2(0): p.I(r)
        p.I(f"""
        s_mov_b32 s26, 0
        s_mov_b32 s25, {2*SLOT}
        s_mov_b32 s37, 0
        s_movk_i32 s39, {SLOT}
        s_waitcnt lgkmcnt(0)
        """)
        p.I(QK1(SX, 0)); p.I(QK2(SX, 0, 0))
        if DIAG:
            stamp(p, 4); cstamp(p, 5); p.I("s_waitcnt lgkmcnt(0)")
        if PRIOS: p.I(f"s_setprio {PRIOS[max(PRIOS)]}")
        p.I("s_nop 7"); p.I("s_nop 3")
        ev = []
        order = sorted(range(4), key=lambda i: (MPOS[i], i))
        for ph in range(8):
            U, n = divmod(ph, 4)
            x = n & 1
            X = SX + 16 * (ph & 1); Y = SX + 16 * ((ph + 1) & 1)
            nx = (n + 1) & 1; npar = ((n + 1) >> 1) & 1
            lastU = (U == 1)
            val = []
            for i in range(16):
                val.append(f"v_exp_f32 v{X+i}, v{X+i}")
                if i >= 2 and i % 2 == 0: val.append(f"v_cvt_pk_bf16_f32 v{Pb(ph)+i//2-1}, v{X+i-2}, v{X+i-1}")
            val[-1], val[-2] = val[-2], val[-1]
            val.append(f"v_cvt_pk_bf16_f32 v{Pb(ph)+7}, v{X+14}, v{X+15}")
            assert len(val) == 24
            if PRIOS and ph in PRIOS: ev.append(("v", f"s_setprio {PRIOS[ph]}"))
            pend = list(order)
            for k in range(25):
                vr = []
                while pend and MPOS[pend[0]] == k:
                    m = pend.pop(0)
                    if m == 0:
                        ev.append(("m", QK1(Y, nx), "K1"))
                        if n == 0: ev.append(("r", "K1", rdK1(2 * U + 1)[0]))
                        if ph == BPH and b_issue: ev.append(("x", "bi"))
                        if n == 2:
                            if lastU: ev.append(("x", "bar"))
                            ev.append(("r", "K1", rdK1(0 if lastU else 2 * U + 2)[0]))
                    elif m == 1:
                        ev.append(("m", QK2(Y, nx, npar), "K2"))
                        if n == 2:
                            ev.append(("r", "K2", rdK2(0 if lastU else U + 1)[0]))
                    else:
                        aa = m - 2
                        ev.append(("m", PV2(1 - x, aa, Pb(ph - 1)), "V%d" % aa))
                        if n in (0, 2): vr.append(("r", "V%d" % aa, rdV(VB if aa else VA, 2 * U + n // 2, aa)[1]))
                if vr:
                    ev.append(("v", "s_mov_b64 exec, s[18:19]")); ev += vr; ev.append(("v", "s_mov_b64 exec, -1"))
                if k < 24: ev.append(("v", val[k]))
                if k == 20 and n == 2 and lastU: ev.append(("x", "dma"))
            if n == 2 and lastU: ev.append(("v", f"v_add_u32 v{AV}, s27, v{AV}"))
        p.R(".p2align 6")
        p.L(f"{name}_loop")
        N = len(ev)
        for i, e in enumerate(ev):
            if e[0] == "v": p.I(e[1])
            elif e[0] == "r": p.I(e[2])
            elif e[0] == "m":
                cnt = 0; j = i - 1; fresh = None
                while True:
                    e2 = ev[j % N]
                    if e2[0] == "r":
                        if e2[1] == e[2]: fresh = True; break
                        cnt += 1
                    if e2[0] == "m" and e2[2] == e[2]: fresh = False; break
                    j -= 1
                if fresh: p.I(f"s_waitcnt lgkmcnt({cnt})")
                p.I(e[1])
            elif e[1] == "bi": b_issue()
            elif e[1] == "bar":
                p.I(f"s_cmp_eq_u32 s26, {NCH-1}"); p.I(f"s_cbranch_scc1 {name}_nw")
                p.I("s_waitcnt vmcnt(0)")
                p.L(f"{name}_nw")
                if b_check: b_check()
                p.I(f"""
                s_barrier
                s_cmp_eq_u32 s37, {2*SLOT}
                s_cselect_b32 s27, {(-2*SLOT) & 0xffffffff:#x}, s39
                s_add_u32 s37, s37, s27
                v_add_u32 v{AK1}, s27, v{AK1}
                v_add_u32 v{AK2}, s27, v{AK2}
                """)
            else:
                p.I(f"""
                s_cmp_ge_u32 s26, {NCH-2}
                s_cbranch_scc1 {name}_nodma
                """)
                dma("s25")
                p.I(f"""
                s_cmp_eq_u32 s25, {2*SLOT}
                s_cselect_b32 s33, {(-2*SLOT) & 0xffffffff:#x}, s39
                s_add_u32 s25, s25, s33
                """)
                p.L(f"{name}_nodma2")
        p.I(f"""
        s_add_u32 s26, s26, 1
        s_cmp_lt_u32 s26, {NCH}
        s_cbranch_scc1 {name}_loop
        """)
        p.I(PV2(1, 0, Pb(7))); p.I(PV2(1, 1, Pb(7)))
    else:
        for r in rdK1(0) + rdK2(0) + rdV(VA, 0, 0): p.I(r)
        p.I(f"""
        s_mov_b32 s26, 0
        s_mov_b32 s25, {2*SLOT}
        s_mov_b32 s37, 0
        s_movk_i32 s39, {SLOT}
        s_waitcnt lgkmcnt(1)
        """)
        p.I(QK1(SX, 0)); p.I(QK2(SX, 0, 0))
        if DIAG:
            stamp(p, 4); cstamp(p, 5); p.I("s_waitcnt lgkmcnt(0)")
        if PRIOS: p.I(f"s_setprio {PRIOS[max(PRIOS)]}")
        p.I("s_nop 7"); p.I("s_nop 3")
        p.R(".p2align 6")
        p.L(f"{name}_loop")
        for ph in range(8):
            U, n = divmod(ph, 4)
            x = n & 1
            X = SX + 16 * (ph & 1); Y = SX + 16 * ((ph + 1) & 1)
            nx = (n + 1) & 1; npar = ((n + 1) >> 1) & 1
            lastU = (U == 1)
            def gap(g):
                e = [f"v_exp_f32 v{X+4*g+i}, v{X+4*g+i}" for i in range(4)]
                if g == 0: c = [f"v_cvt_pk_bf16_f32 v{PP+6+i}, v{Y+12+2*i}, v{Y+13+2*i}" for i in range(2)]
                else: c = [f"v_cvt_pk_bf16_f32 v{PP+2*(g-1)+i}, v{X+4*(g-1)+2*i}, v{X+4*(g-1)+2*i+1}" for i in range(2)]
                for ins in (e[0], c[0], e[1], e[2], c[1], e[3]): p.I(ins)
            if PRIOS and ph in PRIOS: p.I(f"s_setprio {PRIOS[ph]}")
            gap(0)
            if n in (1, 3): p.I(f"s_waitcnt lgkmcnt({1 if n == 1 else 2})")
            p.I(QK1(Y, nx))
            if n == 0:
                for r in rdK1(2 * U + 1): p.I(r)
            if ph == BPH and b_issue: b_issue()
            if n == 2:
                if lastU:
                    p.I(f"s_cmp_eq_u32 s26, {NCH-1}"); p.I(f"s_cbranch_scc1 {name}_nw")
                    p.I("s_waitcnt vmcnt(0)")
                    p.L(f"{name}_nw")
                    if b_check: b_check()
                    p.I(f"""
                    s_barrier
                    s_cmp_eq_u32 s37, {2*SLOT}
                    s_cselect_b32 s27, {(-2*SLOT) & 0xffffffff:#x}, s39
                    s_add_u32 s37, s37, s27
                    v_add_u32 v{AK1}, s27, v{AK1}
                    v_add_u32 v{AK2}, s27, v{AK2}
                    """)
                    for r in rdK1(0): p.I(r)
                else:
                    for r in rdK1(2 * U + 2): p.I(r)
            gap(1)
            if n == 3: p.I("s_waitcnt lgkmcnt(1)")
            p.I(QK2(Y, nx, npar))
            if n == 2:
                for r in rdK2(0 if lastU else U + 1): p.I(r)
                if lastU:
                    p.I(f"""
                    s_cmp_ge_u32 s26, {NCH-2}
                    s_cbranch_scc1 {name}_nodma
                    """)
                    dma("s25")
                    p.I(f"""
                    s_cmp_eq_u32 s25, {2*SLOT}
                    s_cselect_b32 s33, {(-2*SLOT) & 0xffffffff:#x}, s39
                    s_add_u32 s25, s25, s33
                    """)
                    p.L(f"{name}_nodma2")
            gap(2)
            if n in (1, 3): p.I("s_waitcnt lgkmcnt(0)")
            p.I(PV(1 - x, 1))
            if n in (0, 2):
                for r in rdV(VB, 2 * U + n // 2, 1): p.I(r)
            gap(3)
            if n in (0, 2): p.I(f"s_waitcnt lgkmcnt({2 if n == 0 else 3})")
            p.I(PV(x, 0))
            if n == 1:
                for r in rdV(VA, 2 * U + 1, 0): p.I(r)
            if n == 3:
                if lastU:
                    p.I(f"v_add_u32 v{AV}, s27, v{AV}")
                    for r in rdV(VA, 0, 0): p.I(r)
                else:
                    for r in rdV(VA, 2 * U + 2, 0): p.I(r)
        p.I(f"""
        s_add_u32 s26, s26, 1
        s_cmp_lt_u32 s26, {NCH}
        s_cbranch_scc1 {name}_loop
        """)
        Y = SX + 16
        for i in range(2): p.I(f"v_cvt_pk_bf16_f32 v{PP+6+i}, v{Y+12+2*i}, v{Y+13+2*i}")
        p.I(PV(1, 1))
    p.I("s_setprio 3")
    stamp(p, 2); cstamp(p, 6)
    R = SX + 16
    p.I(f"""
    s_add_u32 s33, s24, {SLOT}
    s_xor_b32 s34, s14, 4
    s_mul_i32 s34, s34, 3072
    s_add_u32 s34, s34, {SLOT}
    v_add_u32 v{T0+8}, s33, v{VOFF}
    v_add_u32 v{T0+9}, s34, v{VOFF}
    s_lshl_b32 s33, s16, 9
    v_add_u32 v{T0+2}, s33, v{T0+2}
    v_add_u32 v{T0+3}, s33, v{T0+3}
    s_mul_i32 s34, s31, {OPS}
    s_add_u32 s34, s34, {WS_O}
    s_add_u32 s35, s35, {WS_O}
    s_waitcnt lgkmcnt(0)
    s_barrier
    s_cmp_eq_u32 s16, 0
    s_cbranch_scc1 {name}_k0
    """)
    for kh in (1, 0):
        if kh == 0: p.L(f"{name}_k0")
        snd, own = OA + 16 * (1 - kh), OA + 16 * kh
        for i in range(3): p.I(f"ds_write_b128 v{T0+8}, {v(snd+4*i,4)} offset:{1024*i}")
        p.I("s_waitcnt lgkmcnt(0)")
        p.I("s_barrier")
        for i in (2, 0, 1): p.I(f"ds_read_b128 {v(R+4*i,4)}, v{T0+9} offset:{1024*i}")
        for n_, i in enumerate((2, 0, 1)):
            p.I(f"s_waitcnt lgkmcnt({2-n_})")
            for j in range(4): p.I(f"v_add_f32 v{R+4*i+j}, v{R+4*i+j}, v{own+4*i+j}")
        if kh == 1: p.I(f"s_branch {name}_fin")
    p.L(f"{name}_fin")
    p.I(f"""
    v_mov_b32 v{T0+10}, v{R+8}
    v_mov_b32 v{T0+11}, v{R+8}
    v_max3_f32 v{T0+12}, |v{R}|, |v{R+1}|, |v{R+2}|
    v_max3_f32 v{T0+13}, |v{R+3}|, |v{R+4}|, |v{R+5}|
    v_permlane32_swap_b32 v{T0+10}, v{T0+11}
    v_max3_f32 v{T0+14}, |v{R+6}|, |v{R+7}|, |v{R+8}|
    v_max3_f32 v{T0+15}, |v{R+9}|, |v{R+10}|, |v{R+11}|
    v_rcp_f32 v{T0+10}, v{T0+11}
    v_max3_f32 v{T0+12}, v{T0+12}, v{T0+13}, v{T0+14}
    v_max_f32 v{T0+12}, v{T0+12}, v{T0+15}
    s_mov_b32 s33, 0x1f800000
    s_mov_b32 s36, 0x5f800000
    s_mov_b32 s38, 0x7f000000
    v_cmp_le_f32 s[40:41], s33, v{T0+11}
    v_cmp_ge_f32 s[42:43], s36, v{T0+11}
    v_cmp_ge_f32 vcc, s38, v{T0+12}
    """)
    for i in range(12): p.I(f"v_mul_f32 v{R+i}, v{R+i}, v{T0+10}")
    p.I(f"""
    s_and_b64 s[40:41], s[40:41], s[42:43]
    s_and_b64 s[40:41], s[40:41], vcc
    s_cmp_eq_u64 s[40:41], -1
    s_cbranch_scc1 {name}_ok
    s_cmp_eq_u32 s26, 99
    s_cbranch_scc0 {name}_slow
    """)
    p.L(f"{name}_ok")
    for i in range(6): p.I(f"v_cvt_pk_bf16_f32 v{SX+i}, v{R+2*i}, v{R+2*i+1}")
    p.I(f"""
    buffer_store_dwordx4 {v(SX,4)}, v{T0+3}, {W}, s34 offen {"sc1" if tail else ""}
    s_mov_b32 exec_hi, 0
    buffer_store_dwordx2 {v(SX+4,2)}, v{T0+2}, {W}, s35 offen {"sc1" if tail else ""}
    """)
    stamp(p, 3)
    if tail: tail(p)
    else:
        stamp_flush(p, 9, WSRD, 14, kidx=kidx)
        p.I("s_endpgm")
    p.L(f"{name}_nodma")
    if late: late(p)
    p.I(f"s_branch {name}_nodma2")

    p.L(f"{name}_slow")
    GK1, GK2, GV, MX = T0+8, T0+9, T0+12, T0+13
    p.I(f"""
    v_lshlrev_b32 v{GK1}, 15, v{T0+1}
    v_lshl_add_u32 v{GK1}, v{T0}, 4, v{GK1}          ; h*32768 + key*16
    v_lshlrev_b32 v{GK2}, 4, v{T0}
    v_mul_u32_u24 v{GV}, 320, v{T0+1}
    v_lshl_add_u32 v{GV}, v{T0}, 4, v{GV}
    v_mov_b32 v{MX}, 0xff800000
    s_mov_b32 s27, 0                                 ; pass
    """)
    for i in range(16): p.I(f"v_mov_b32 v{OA+i}, 0")
    p.I(f"s_cmp_eq_u32 s16, 0"); p.I(f"s_cbranch_scc1 {name}_spass")
    for i in range(8): p.I(f"v_mov_b32 v{QF+i}, v{QF+8+i}")
    p.L(f"{name}_spass")
    p.I(f"""
    s_add_u32 s20, s31, 80
    s_lshl_b32 s20, s20, 15
    s_add_u32 s21, s30, 80
    s_lshl_b32 s21, s21, 15
    s_lshl_b32 s33, s29, 3
    s_add_u32 s21, s21, s33
    s_mul_i32 s22, s12, 81920
    s_add_u32 s22, s22, {WS_V}
    s_mov_b32 s26, 0
    """)
    p.L(f"{name}_sloop")
    p.I(f"""
    buffer_load_dwordx4 {v(K1,4)}, v{GK1}, {W}, s20 offen
    buffer_load_dwordx2 {v(K2,2)}, v{GK2}, {W}, s21 offen
    s_mov_b64 exec, s[18:19]
    buffer_load_dwordx4 {v(VA,4)}, v{GV}, {W}, s22 offen
    buffer_load_dwordx4 {v(VB,4)}, v{GV}, {W}, s22 offen offset:640
    s_mov_b64 exec, -1
    s_waitcnt vmcnt(0)
    """)
    p.I(QK1(SX, 0)); p.I(QK2(SX, 0, 0))
    p.I(f"""
    s_nop 7
    s_nop 7
    s_cmp_eq_u32 s27, 0
    s_cbranch_scc0 {name}_sp2
    """)
    for i in range(8): p.I(f"v_max3_f32 v{MX}, v{MX}, v{SX+2*i}, v{SX+2*i+1}")
    p.I(f"s_branch {name}_snext")
    p.L(f"{name}_sp2")
    for i in range(16): p.I(f"v_sub_f32 v{SX+i}, v{SX+i}, v{MX}")
    for i in range(16): p.I(f"v_exp_f32 v{SX+i}, v{SX+i}")
    for i in range(8): p.I(f"v_cvt_pk_bf16_f32 v{PP+i}, v{SX+2*i}, v{SX+2*i+1}")
    p.I(PV(0, 0)); p.I(PV(0, 1))
    p.L(f"{name}_snext")
    p.I(f"""
    s_add_u32 s20, s20, 512
    s_add_u32 s21, s21, 512
    s_add_u32 s22, s22, 1280
    s_add_u32 s26, s26, 1
    s_nop 7
    s_cmp_lt_u32 s26, 64
    s_cbranch_scc1 {name}_sloop
    s_cmp_eq_u32 s27, 1
    s_cbranch_scc1 {name}_sdone
    v_mov_b32 v{T0+14}, v{MX}
    v_mov_b32 v{T0+15}, v{MX}
    v_permlane32_swap_b32 v{T0+14}, v{T0+15}
    v_max3_f32 v{MX}, v{MX}, v{T0+14}, v{T0+15}
    s_mov_b32 s27, 1
    s_branch {name}_spass
    """)
    p.L(f"{name}_sdone")
    p.I(f"""
    s_mov_b32 s26, 99
    s_nop 7
    s_nop 3
    """)
    for i in range(12): p.I(f"v_mov_b32 v{SX+16+i}, v{OA+i}")
    p.I(f"s_branch {name}_fin")

def gen_k2(p, name="attn_kernel"):
    p.R(f".p2align 8\n.type {name},@function")
    p.L(name)
    stamp(p, 0)
    p.I(f"""
    s_load_dwordx2 s[4:5], s[0:1], {KA['ws']}
    s_cmp_ge_u32 s2, 256
    s_cbranch_scc1 {name}_exit
    v_lshrrev_b32 v1, 6, v0
    v_and_b32 v2, 63, v0
    v_readfirstlane_b32 s14, v1
    s_waitcnt lgkmcnt(0)
    """)
    srd(p, 8, 4, WS_SIZE)
    attn_body(p, name)
    p.L(f"{name}_exit")
    p.I("s_endpgm")
    return dict(name=name, grid=256, block=512, lds=3*SLOT, vgpr=128)
```
